```python
import torch

def _softmax(x, axis=-1):
    return torch.softmax(x, dim=axis)
def _gelu(x):
    return torch.nn.functional.gelu(x, approximate="tanh")
def _silu(x):
    return torch.nn.functional.silu(x)
def _sigmoid(x):
    return torch.sigmoid(x)
def _layernorm(x, axis=-1, eps=1e-5):
    m = x.mean(dim=axis, keepdim=True)
    v = x.var(dim=axis, keepdim=True, unbiased=False)
    return (x - m) / torch.sqrt(v + eps)
def _scatter_add(tgt, idx, src, axis=0):
    return tgt.clone().index_add_(axis, idx, src)
def _segment_sum(src, seg, n):
    out = torch.zeros((n,) + src.shape[1:], dtype=src.dtype)
    return out.index_add_(0, seg, src)
def _pad(x, pw):
    flat = tuple(v for pair in reversed(pw) for v in pair)
    return torch.nn.functional.pad(x, flat)

kernel_name = 'gated_mix__linear_kernel_hedgehog__dense_activation_relu__prompt'

def setup_inputs():

    _w = (lambda a: (lambda t: t.to(torch.bfloat16) if t.is_floating_point() else t)(torch.as_tensor(a)))
    def _A_setup():
        B, S, D, H = 1, 2048, 512, 32
        Dh = D // H
        return {
            "x": _w((lambda *s: torch.randn(*s, dtype=torch.bfloat16) * 0.05)(B, S, D)),
            "wqkv": _w((lambda *s: torch.randn(*s, dtype=torch.bfloat16) * 1.6)(D, 3 * D)),
            "w_phi": _w((lambda *s: torch.randn(*s, dtype=torch.bfloat16) * 1.6)(H, Dh, Dh) * (Dh ** -0.5)),
            "wo": _w((lambda *s: torch.randn(*s, dtype=torch.bfloat16) * 0.1)(D, D)),
        }
    _A_in = _A_setup()

    def _B_setup():
        B, S, D, Dff = 1, 2048, 512, 1376
        return {
            "x": _w((lambda *s: torch.randn(*s, dtype=torch.bfloat16) * 0.05)(B, S, D)),
            "w1": _w((lambda *s: torch.randn(*s, dtype=torch.bfloat16) * 0.05)(D, Dff)),
            "w2": _w((lambda *s: torch.randn(*s, dtype=torch.bfloat16) * 0.05)(Dff, D)),
        }
    _B_in = _B_setup()

    return {
        "A_x": _A_in["x"],
        "A_wqkv": _A_in["wqkv"],
        "A_w_phi": _A_in["w_phi"],
        "A_wo": _A_in["wo"],
        "B_x": _B_in["x"],
        "B_w1": _B_in["w1"],
        "B_w2": _B_in["w2"],
        "gate_w": _w((lambda *s: torch.randn(*s, dtype=torch.bfloat16) * 0.05)(512) * 16.0),
    }

def reference(A_x, A_wqkv, A_w_phi, A_wo, B_x, B_w1, B_w2, gate_w):
    def _A_ref(x, wqkv, w_phi, wo):
        B, S, D = x.shape
        H = 32; Dh = D // H
        qkv = (lambda x, *d: x.permute(*d))((x @ wqkv).reshape(B, S, 3, H, Dh), 2, 0, 3, 1, 4)
        q, k, v = qkv[0], qkv[1], qkv[2]
        pq = torch.einsum("bhsd,hdf->bhsf", q, w_phi)
        pk = torch.einsum("bhsd,hdf->bhsf", k, w_phi)
        phi_q = torch.concatenate([_softmax(pq, axis=-1), _softmax(-pq, axis=-1)], axis=-1)
        phi_k = torch.concatenate([_softmax(pk, axis=-1), _softmax(-pk, axis=-1)], axis=-1)
        kv = torch.einsum("bhsf,bhsd->bhfd", phi_k, v)
        z  = torch.einsum("bhsf->bhf", phi_k)
        num = torch.einsum("bhqf,bhfd->bhqd", phi_q, kv)
        den = torch.einsum("bhqf,bhf->bhq", phi_q, z)[..., None] + 1e-6
        o = num / den
        return (lambda x, *d: x.permute(*d))(o, 0, 2, 1, 3).reshape(B, S, D) @ wo

    def _B_ref(x, w1, w2):
        h = torch.einsum("bsd,df->bsf", x, w1)
        zero = torch.zeros_like(h)
        h = torch.maximum(h, zero)
        return torch.einsum("bsf,fd->bsd", h, w2)

    x = A_x
    g = _sigmoid((x * gate_w).sum(-1, keepdims=True))
    a = _A_ref(x, A_wqkv, A_w_phi, A_wo)
    b = _B_ref(x, B_w1, B_w2)
    return g * a + (1 - g) * b
```

```python
KNAME = "gated_mix__linear_kernel_hedgehog__dense_activation_relu__prompt_kernel"
class Asm:
    def __init__(self):
        self.lines = []
        self.nlabel = 0
    def __call__(self, s):
        for l in s.strip("\n").split("\n"):
            self.lines.append(l if l.strip().endswith(":") else "    " + l.strip())
    def label(self, name):
        self.lines.append(name + ":")
    def newlabel(self, p="L"):
        self.nlabel += 1
        return f"{p}_{self.nlabel}"
    def text(self):
        return "\n".join(self.lines) + "\n"

HEADER = """; Kernarg layout for this problem (88 bytes, ptrs only, base s[0:1]):
"""
def kernel_open(name):
    return f""".globl {name}
.p2align 8
.type {name},@function
{name}:
"""
def descriptor(name, vgpr, agpr=0, sgpr=102):
    acc = (vgpr + 3) // 4 * 4
    nfv = acc + agpr if agpr else vgpr
    return f""".p2align 6
.amdhsa_kernel {name}
  .amdhsa_next_free_vgpr {nfv}
  .amdhsa_next_free_sgpr {sgpr}
  .amdhsa_accum_offset {acc}
  .amdhsa_group_segment_fixed_size 0
  .amdhsa_kernarg_size 88
  .amdhsa_user_sgpr_count 2
  .amdhsa_user_sgpr_kernarg_segment_ptr 1
  .amdhsa_system_sgpr_workgroup_id_x 1
.end_amdhsa_kernel
"""
def single(body, grid, block, lds, vgpr, agpr=0, sgpr=102, name=KNAME):
    return (HEADER + f"; @launch grid=({grid},1,1) block=({block},1,1) lds={lds}\n"
            + '.amdgcn_target "amdgcn-amd-amdhsa--gfx950"\n.text\n' + kernel_open(name) + body
            + '.section .rodata,"a"\n' + descriptor(name, vgpr, agpr, sgpr))
def multi(kernels):
    s = HEADER
    for k in kernels:
        s += f"; @launch kernel={k['name']} grid=({k['grid']},1,1) block=({k['block']},1,1) lds={k['lds']}\n"
    s += '.amdgcn_target "amdgcn-amd-amdhsa--gfx950"\n.text\n'
    seen = []
    for k in kernels:
        if k['name'] in seen: continue
        seen.append(k['name'])
        s += kernel_open(k['name']) + k['body']
    s += '.section .rodata,"a"\n'
    seen = []
    for k in kernels:
        if k['name'] in seen: continue
        seen.append(k['name'])
        s += descriptor(k['name'], k['vgpr'], k.get('agpr', 0), k.get('sgpr', 102))
    return s
```

```python
import re
class Item:
    __slots__ = ("text", "tag", "cond", "kind")
    def __init__(self, text, tag=None, cond=False):
        self.text = text.strip(); self.tag = tag; self.cond = cond
        self.kind = classify(self.text)
def classify(t):
    if t.endswith(":"): return "label"
    m = t.split()[0]
    if m in ("WAITVM", "WAITLG", "WAITVMLG"): return "wait"
    if m.startswith("v_mfma"): return "mfma"
    if m.startswith("buffer_") or m.startswith("global_"): return "vmem"
    if m.startswith("ds_"): return "ds"
    if m.startswith("s_load") or m.startswith("s_memtime") or m.startswith("s_memrealtime") or m.startswith("s_atomic"): return "smem"
    if m.startswith("v_"): return "valu"
    if m.startswith("s_"): return "salu"
    if m.startswith(";") or m.startswith("."): return "meta"
    raise ValueError("unknown instr: " + t)

class Prog:
    def __init__(self):
        self.items = []
        self.cond = False
    def __call__(self, s, tag=None):
        ls = [l.split(";")[0].strip() for l in s.strip("\n").split("\n")]
        ls = [l for l in ls if l]
        for i, l in enumerate(ls):
            self.items.append(Item(l, tag if i == len(ls) - 1 else None, self.cond))
    def ext(self, items):
        self.items.extend(items)
    def waitvm(self, tag): self.items.append(Item(f"WAITVM {tag}"))
    def waitlg(self, tag): self.items.append(Item(f"WAITLG {tag}"))
    def sub(self):
        p = Prog(); p.cond = self.cond; return p

def interleave(primary, secondary, positions):
    out = []; k = 0
    assert len(positions) == len(secondary)
    order = sorted(range(len(secondary)), key=lambda i: (positions[i], i))
    for i, it in enumerate(primary):
        out.append(it)
        while k < len(order) and positions[order[k]] <= i:
            out.extend(secondary[order[k]]); k += 1
    while k < len(order):
        out.extend(secondary[order[k]]); k += 1
    return out

def after_kind(primary, kind, every_list):
    idx = [i for i, it in enumerate(primary) if it.kind == kind]
    return [idx[min(n, len(idx) - 1)] for n in every_list]

def resolve_waits(items):
    out = []
    vm = []
    lg = []
    smem_out = False
    for it in items:
        if it.kind == "vmem":
            if not it.text.startswith("buffer_inv") or True:
                vm.append((it.tag, it.cond))
            out.append(it)
        elif it.kind == "ds":
            lg.append((it.tag, it.cond)); out.append(it)
        elif it.kind == "smem":
            smem_out = True; out.append(it)
        elif it.kind == "wait":
            op, tag = it.text.split()
            lst = vm if op == "WAITVM" else lg
            pos = [i for i, (t, c) in enumerate(lst) if t == tag]
            assert pos, f"wait for unknown tag {tag}"
            p = pos[-1]
            n = sum(1 for (t, c) in lst[p + 1:] if not c)
            if op == "WAITVM":
                n = min(n, 63)
                out.append(Item(f"s_waitcnt vmcnt({n})"))
            else:
                assert not smem_out, "counted LDS wait with SMEM outstanding"
                n = min(n, 15)
                out.append(Item(f"s_waitcnt lgkmcnt({n})"))
        else:
            if it.text.startswith("s_waitcnt") and "lgkmcnt(0)" in it.text: smem_out = False
            out.append(it)
    return out

_reg = re.compile(r"^(v|a|s)(\d+)$|^(v|a|s)\[(\d+):(\d+)\]$")
def regs(op):
    op = op.strip()
    neg = op.startswith("-")
    if neg: op = op[1:]
    if op.startswith("abs(") or op.startswith("|"): op = op.strip("|").replace("abs(", "").rstrip(")")
    if op == "vcc": return {("s", "vcc")}
    if op == "exec": return {("s", "exec")}
    if op == "m0": return {("s", "m0")}
    m = _reg.match(op)
    if not m: return set()
    if m.group(1): return {(m.group(1), int(m.group(2)))}
    return {(m.group(3), i) for i in range(int(m.group(4)), int(m.group(5)) + 1)}
TRANS = ("v_exp_f32", "v_log_f32", "v_rcp_f32", "v_rsq_f32", "v_sqrt_f32", "v_sin_f32", "v_cos_f32", "v_rcp_iflag_f32")
def parse(it):
    t = it.text
    m = t.split()[0]
    rest = t[len(m):].strip()
    ops = [o.strip() for o in re.split(r",\s*(?![^\[]*\])", rest)] if rest else []
    if ops:
        last = ops[-1].split()
        ops[-1] = last[0] if last else ""
        mods = " ".join(last[1:])
    else: mods = ""
    w = set(); r = set(); d = dict(m=m, mods=mods)
    R = [regs(o) for o in ops]
    k = it.kind
    if k == "mfma":
        w = R[0]; d["A"] = R[1]; d["B"] = R[2]; d["C"] = R[3] if len(R) > 3 else set(); r = R[1] | R[2] | d["C"]
        d["passes"] = 8 if "32x32" in m else 4
    elif k == "valu":
        if m.startswith("v_cmp"):
            w = R[0]; r = set().union(*R[1:])
            if m.startswith("v_cmpx"): w = w | {("s", "exec")}
        elif m.startswith("v_permlane"):
            w = R[0] | R[1]; r = R[0] | R[1]
        elif m.startswith("v_add_co") or m.startswith("v_sub_co") or m.startswith("v_addc") or m.startswith("v_subb"):
            w = R[0] | R[1]; r = set().union(*R[2:])
        elif m == "v_nop": pass
        else:
            w = R[0]; r = set().union(*R[1:]) if len(R) > 1 else set()
            if m.startswith("v_fmac") or m.startswith("v_writelane") or m.startswith("v_pk_fmac") or m.startswith("v_dot2c"): r |= R[0]
    elif k == "ds":
        if m.startswith("ds_read") or m.startswith("ds_bpermute") or m.startswith("ds_swizzle"):
            w = R[0]; r = set().union(*R[1:])
        else: r = set().union(*R)
    elif k == "vmem":
        if m.startswith("buffer_inv") or m.startswith("buffer_wbl2"): pass
        elif "lds" in mods.split():
            r = set().union(*R) | {("s", "m0")}; d["dma"] = True
        elif "_load" in m:
            w = R[0]; r = set().union(*R[1:])
        elif m.startswith("buffer_"):
            r = set().union(*R); d["sdata"] = R[0]
            if "atomic" in m and "sc0" in mods.split(): w = R[0]
        else:
            r = set().union(*R); d["sdata"] = R[1]
        d["wide"] = m.endswith("x4") or m.endswith("x3")
    elif k in ("salu", "smem"):
        if m.startswith("s_cmp") or m.startswith("s_cbranch") or m.startswith("s_branch") or m in ("s_nop", "s_waitcnt", "s_barrier", "s_endpgm", "s_setprio", "s_sleep", "s_bitcmp1_b32", "s_bitcmp0_b32"):
            r = set().union(*R) if R else set()
        else:
            w = R[0] if R else set(); r = set().union(*R[1:]) if len(R) > 1 else set()
            if "saveexec" in m: w = w | {("s", "exec")}
    d["w"] = w; d["r"] = r
    return d

def need(p, pk, c, ck):
    n = 0
    vw = {x for x in p["w"] if x[0] in "va"}; sw = {x for x in p["w"] if x[0] == "s"}
    if pk == "valu":
        if ck == "mfma" and vw & c["r"]: n = max(n, 2)
        if ck == "mfma" and ("s", "exec") in sw: n = max(n, 4)
        if ck == "valu":
            if p["m"] in TRANS and vw & c["r"] and c["m"] not in TRANS: n = max(n, 1)
            if c["m"].startswith("v_permlane") and vw & c["r"]: n = max(n, 2)
            if (c["m"].startswith("v_readlane") or c["m"].startswith("v_readfirstlane")) and vw & c["r"]: n = max(n, 1)
            if "dpp" in c["mods"] or "row_" in c["mods"] or "quad_perm" in c["mods"]:
                if vw & c["r"]: n = max(n, 2)
            if sw & c["r"]: n = max(n, 4 if c["m"].startswith("v_readlane") or c["m"].startswith("v_writelane") else 2)
            if ("s", "vcc") in sw and c["m"].startswith("v_cndmask"): n = max(n, 2)
            if ("s", "exec") in sw and (c["m"].startswith("v_read") or c["m"].startswith("v_writelane") or c["m"].startswith("v_permlane")): n = max(n, 4)
            if ("op_sel" in p["mods"] and not p["m"].startswith("v_pk")) and vw & (c["r"] | c["w"]): n = max(n, 1)
        if ck == "vmem" and sw & c["r"]: n = max(n, 5)
        if ck in ("salu", "smem") and sw & c["r"]: n = max(n, 1)
    if pk == "mfma":
        P = p["passes"]
        full = {4: 8, 8: 12}[P]
        if ck == "mfma":
            if vw & (c["A"] | c["B"]): n = max(n, full)
            if vw & c["C"]:
                if not (vw == c["C"] and c["passes"] == P): n = max(n, {4: 6, 8: 10}[P])
            elif vw & c["w"]: n = max(n, {4: 6, 8: 10}[P])
        elif ck in ("valu", "vmem", "ds"):
            if vw & (c["r"] | c["w"]): n = max(n, full)
            if ck == "valu" and p["C"] & c["w"]: n = max(n, {4: 3, 8: 7}[P])
            if ck in ("vmem", "ds") and p["C"] & c["w"]: n = max(n, {4: 3, 8: 7}[P])
    if pk == "salu":
        if ck == "vmem" and ("s", "m0") in sw and c.get("dma"): n = max(n, 1)
    if pk == "vmem" and p.get("wide") and p.get("sdata"):
        if p["sdata"] & c["w"]: n = max(n, 2 if ck == "valu" else 1)
    return n

def slots(it):
    if it.kind in ("label", "meta"): return 0
    if it.text.startswith("s_nop"): return int(it.text.split()[1]) + 1
    return 1

def pad_path(path):
    res = {}
    info = [parse(it) if it.kind not in ("label", "meta") else None for it in path]
    for j, c in enumerate(path):
        if info[j] is None: continue
        dist = 0; worst = 0
        i = j - 1
        while i >= 0 and dist < 20:
            if info[i] is not None:
                n = need(info[i], path[i].kind, info[j], c.kind) - dist
                if n > worst: worst = n
                dist += slots(path[i]) + res.get(id(path[i]), 0)
            i -= 1
        if worst > 0: res[id(c)] = worst
    return res

def paths_of(items):
    labels = {it.text[:-1]: i for i, it in enumerate(items) if it.kind == "label"}
    yield items
    for i, it in enumerate(items):
        if it.kind == "salu" and (it.text.startswith("s_cbranch") or it.text.startswith("s_branch")):
            tgt = it.text.split()[1]
            if tgt not in labels: continue
            t = labels[tgt]
            lo = max(0, i - 40)
            yield items[lo:i + 1] + items[t:t + 40]

def hazard_pad(items):
    for _ in range(10):
        need_map = {}
        for path in paths_of(items):
            for k, v in pad_path(path).items():
                need_map[k] = max(need_map.get(k, 0), v)
        if not need_map: return items
        out = []
        for it in items:
            n = need_map.get(id(it), 0)
            while n > 0:
                k = min(n, 16); out.append(Item(f"s_nop {k-1}")); n -= k
            out.append(it)
        items = out
    raise RuntimeError("hazard padding did not converge")

def render(items):
    return "\n".join((it.text if it.kind == "label" else "    " + it.text) for it in items) + "\n"
```

```python
import sys
from gcore import *
from ag import HEADER, kernel_open, descriptor, KNAME

STAMPS = False
A2_STRIDE = 118 * 1024
KV_OFF = 8 << 20; HP_STRIDE = 6144
G_OFF = 9 << 20
F_OFF = 10 << 20
F_HQ = F_OFF; F_HK = F_OFF + 8192; F_O = F_OFF + 16384; F_KVD = F_OFF + 24576; F_Z = F_OFF + 32768
STAMP_OFF = 200 << 20
RING = 32768; REGB = 98304
NA = 10; W2A_W = NA * 2048; MISC = 4 * W2A_W
NB = 8
LDS_BYTES = 163840
sX, sWA, sWB, sW2, sWO, sWS, sOUT = "s[28:31]", "s[32:35]", "s[36:39]", "s[40:43]", "s[44:47]", "s[48:51]", "s[52:55]"
WAVE, RB, HG, SIG, RH, CH, RT64, CT, NONCE, RHO = "s56", "s57", "s58", "s59", "s60", "s61", "s62", "s63", "s64", "s65"
XSO, WSO, T0, T1, T2, T3, CNT = "s66", "s67", "s68", "s69", "s70", "s71", "s72"
M0X, M0W, M0B, M0A2, M0B2 = "s73", "s74", "s75", "s76", "s77"
C2S, C2N, RHO2, RHO3, KS = "s78", "s79", "s80", "s81", "s82"
BLK, NBLK = "s83", "s84"
LOG2E = "s98"; LOG2EP = "s[98:99]"
MK16 = "s[86:87]"
STB = 88
vL = "v1"
vXs = [2, 3, 4, 5]; vWs = [6, 7, 8, 9]; vWb = [10, 11]; vW2 = [12, 13]
lX = [14, 15, 16, 17]; lXh = [18, 19, 20, 21]; lW = [22, 23]; lWh = [24, 25]; lB = 26
lW2A = [27, 28]; lW2B = [29, 30]
vA2l = [31, 32]; vA2s = [33, 34]; vFl = 35; vP = 36; vStamp = 37; vG = [38, 39]
WB = [40, 48]
vT = [56, 57, 58, 59, 60, 61, 62, 63]
ACC1 = 64; ACC2 = 128; PP = 160
def vr(b, n): return f"v[{b}:{b+n-1}]"
def ar(b, n): return f"a[{b}:{b+n-1}]"
MF = "v_mfma_f32_32x32x16_bf16"

class K(Prog):
    def __init__(self, role):
        super().__init__(); self.role = role; self.nl = 0; self.nst = 0
    def lab(self, p):
        self.nl += 1; return f"L{self.role}_{p}{self.nl}"
    def stamp(self):
        if not STAMPS: return
        self(f"s_memtime s[88:89]\ns_waitcnt lgkmcnt(0)\nv_writelane_b32 v{vStamp}, s88, {self.nst}"); self.nst += 1
    def poll(self, soff_code, soff):
        l = self.lab("poll"); d = self.lab("pdone")
        self(soff_code)
        self(f"s_mov_b32 {CNT}, 200000")
        self(l + ":")
        self(f"""buffer_load_dword v{vP}, v{vFl}, {sWS}, {soff} offen sc1
        s_waitcnt vmcnt(0)
        v_cmp_ne_u32 vcc, {NONCE}, v{vP}
        s_nop 1
        s_cbranch_vccz {d}
        s_sub_u32 {CNT}, {CNT}, 1
        s_cbranch_scc0 {l}""")
        self(d + ":")
    def flag(self, soff_code):
        self(soff_code)
        self(f"""v_mov_b32 v{vT[6]}, {T0}
        v_mov_b32 v{vT[7]}, {NONCE}
        s_mov_b64 exec, 1
        buffer_store_dword v{vT[7]}, v{vT[6]}, {sWS}, 0 offen sc1
        s_mov_b64 exec, -1""")

def entry():
    p = Prog()
    p(f"""
    s_cmp_ge_u32 s2, 256
    s_cbranch_scc1 L_end
    s_load_dwordx16 s[4:19], s[0:1], 0
    s_load_dwordx4 s[20:23], s[0:1], 64
    s_load_dwordx2 s[24:25], s[0:1], 80
    v_lshrrev_b32 v2, 6, v0
    v_and_b32 {vL}, 63, v0
    v_readfirstlane_b32 {WAVE}, v2
    s_lshr_b32 {T0}, s2, 3               ; j
    s_and_b32 {CT}, {T0}, 7
    s_and_b32 {T1}, s2, 1
    s_lshl_b32 {T1}, {T1}, 3
    s_add_u32 {RB}, {T1}, {CT}
    s_lshr_b32 {T2}, s2, 6               ; j>>3
    s_and_b32 {T1}, s2, 6
    s_and_b32 {T3}, {T2}, 1
    s_add_u32 {HG}, {T1}, {T3}
    s_lshl_b32 {T3}, {T2}, 1
    s_add_u32 {SIG}, {CT}, {T3}
    s_and_b32 {SIG}, {SIG}, 7
    s_and_b32 {T1}, s2, 7
    s_lshl_b32 {T1}, {T1}, 2
    s_add_u32 {RT64}, {T1}, {T2}
    s_add_u32 {RHO}, {CT}, {T3}
    s_lshl_b32 {RHO}, {RHO}, 1
    s_and_b32 {RHO}, {RHO}, 15
    s_lshr_b32 {RH}, {WAVE}, 1
    s_and_b32 {CH}, {WAVE}, 1
    s_cmp_ge_u32 s2, 128
    s_cbranch_scc1 L_Q
    """)
    return p.items

def srd(p, name, ptr, size):
    b = int(name[2:name.index(":")])
    p(f"s_mov_b32 s{b}, s{ptr}\ns_mov_b32 s{b+1}, s{ptr+1}\ns_mov_b32 s{b+2}, {size}\ns_mov_b32 s{b+3}, 0x20000")

def build(role):
    KV = role == "KV"
    p = K(role)
    WAS = 3072 if KV else 2752
    WBS = 2752 if KV else 3072
    t = vT
    if STAMPS:
        p(f"v_mov_b32 v{vStamp}, 0\ns_memrealtime s[90:91]")
    p.stamp()
    p(f"""
    v_lshrrev_b32 v{t[0]}, 3, {vL}          ; row8
    v_and_b32 v{t[1]}, 7, {vL}              ; pos
    v_lshrrev_b32 v{t[2]}, 4, {vL}          ; row8>>1  (= l>>4)
    v_xor_b32 v{t[1]}, v{t[1]}, v{t[2]}
    s_lshl_b32 {T0}, {RB}, 7
    s_lshl_b32 {T1}, {WAVE}, 5
    s_add_u32 {T0}, {T0}, {T1}
    v_add_u32 v{t[3]}, {T0}, v{t[0]}
    v_lshlrev_b32 v{t[3]}, 10, v{t[3]}
    v_lshl_add_u32 v{vXs[0]}, v{t[1]}, 4, v{t[3]}
    v_xor_b32 v{vXs[1]}, 64, v{vXs[0]}
    v_add_u32 v{vXs[1]}, 7168, v{vXs[1]}
    v_add_u32 v{vXs[2]}, 14336, v{vXs[0]}
    v_add_u32 v{vXs[3]}, 14336, v{vXs[1]}
    v_bfe_u32 v{t[4]}, {vL}, 2, 2
    v_and_b32 v{t[5]}, 3, {vL}              ; sub / c
    """)
    if KV:
        p(f"""
        v_xor_b32 v{t[6]}, v{t[4]}, v{t[2]}     ; b
        v_and_b32 v{t[7]}, 1, v{t[6]}
        v_lshrrev_b32 v{t[6]}, 1, v{t[6]}
        v_lshlrev_b32 v{t[6]}, 10, v{t[6]}
        v_lshl_add_u32 v{t[6]}, v{t[7]}, 6, v{t[6]}
        s_lshl_b32 {T0}, {HG}, 7
        s_add_u32 {T0}, {T0}, 1024
        """)
    else:
        p(f"""
        v_add_u32 v{t[6]}, v{t[4]}, v{t[2]}
        v_and_b32 v{t[6]}, 3, v{t[6]}           ; b = (p + r) & 3
        v_lshlrev_b32 v{t[6]}, 6, v{t[6]}
        s_lshl_b32 {T0}, {HG}, 8
        """)
    p(f"""
    v_lshl_add_u32 v{t[6]}, v{t[5]}, 4, v{t[6]}
    s_mul_i32 {T1}, {WAVE}, {16 * WAS}
    s_add_u32 {T0}, {T0}, {T1}
    v_mul_u32_u24 v{t[7]}, {WAS}, v{t[2]}
    v_add3_u32 v{vWs[0]}, v{t[6]}, v{t[7]}, {T0}
    v_add_u32 v{vWs[1]}, {4 * WAS - 1024}, v{vWs[0]}
    v_add_u32 v{vWs[2]}, {8 * WAS - 2048}, v{vWs[0]}
    v_add_u32 v{vWs[3]}, {12 * WAS - 3072}, v{vWs[0]}
    s_lshl_b32 {M0X}, {WAVE}, 12
    s_add_u32 {M0W}, {M0X}, 16384
    s_waitcnt lgkmcnt(0)
    """)
    srd(p, sX, 4, 2097152)
    srd(p, sWA, 6 if KV else 14, 1572864 if KV else 1409024)
    def stage_dma(s):
        gs = []
        if s < 8:
            q = p.sub()
            q(f"s_add_u32 {T0}, {SIG}, {s}\ns_and_b32 {T0}, {T0}, 7\ns_lshl_b32 {XSO}, {T0}, 7\ns_mul_i32 {WSO}, {T0}, {64 * WAS}")
            q(f"s_add_u32 m0, {M0X}, {(s % 3) * RING}")
            for i in range(4):
                q(f"buffer_load_dwordx4 v{vXs[i]}, {sX}, {XSO} offen offset:{i*1024} lds")
                gs.append(q.items); q = p.sub()
            q(f"s_add_u32 m0, {M0W}, {(s % 3) * RING}")
            for i in range(4):
                q(f"buffer_load_dwordx4 v{vWs[i]}, {sWA}, {WSO} offen offset:{i*1024} lds", tag=f"st{s}")
                gs.append(q.items); q = p.sub()
        else:
            for cs in range((s - 8) * 4, (s - 8) * 4 + 4):
                q = p.sub()
                q(f"s_add_u32 {T0}, {SIG}, {cs}\ns_and_b32 {T0}, {T0}, 7\ns_mul_i32 {WSO}, {T0}, {64 * WBS}")
                q(f"s_add_u32 m0, {M0B}, {cs * 8192}")
                for i in range(2):
                    q(f"buffer_load_dwordx4 v{vWb[i]}, {sWB}, {WSO} offen offset:{i*1024} lds", tag=f"st{s}")
                    gs.append(q.items); q = p.sub()
        return gs
    for g in stage_dma(0): p.ext(g)
    p(f"""
    s_mov_b32 s92, s8
    s_mov_b32 s93, s9
    s_mov_b32 s94, 16384
    s_mov_b32 s95, 0x20000
    s_lshl_b32 {T0}, {HG}, 11
    s_lshl_b32 {T1}, {CH}, 10
    s_add_u32 {T0}, {T0}, {T1}
    s_lshl_b32 {T1}, {WAVE}, 10
    s_add_u32 m0, {T1}, {REGB}
    v_lshlrev_b32 v{t[0]}, 4, {vL}
    buffer_load_dwordx4 v{t[0]}, s[92:95], {T0} offen lds
    """, tag="wphi")
    for s in (1, 2):
        for g in stage_dma(s): p.ext(g)
    srd(p, sWS, 24, 0x10000000)
    srd(p, sWB, 14 if KV else 6, 1409024 if KV else 1572864)
    srd(p, sW2, 16, 1409024)
    srd(p, sWO, 10, 524288)
    srd(p, sOUT, 20, 2097152)
    if KV:
        l = p.lab("nononce")
        p(f"s_or_b32 {T0}, s2, {WAVE}\ns_cmp_lg_u32 {T0}, 0\ns_cbranch_scc1 {l}")
        p.cond = True
        p(f"""s_memrealtime s[96:97]
        s_waitcnt lgkmcnt(0)
        s_or_b32 s96, s96, 1
        v_mov_b32 v{t[0]}, 0
        v_mov_b32 v{t[1]}, s96
        s_mov_b64 exec, 1
        global_store_dword v{t[0]}, v{t[1]}, s[22:23] sc1
        s_mov_b64 exec, -1""")
        p.cond = False
        p(l + ":")
        l = p.lab("nozero")
        p(f"s_cmp_lg_u32 {RB}, 0\ns_cbranch_scc1 {l}")
        p.cond = True
        p(f"""s_mul_i32 {T0}, {HG}, {2 * HP_STRIDE}
        s_mul_i32 {T1}, {WAVE}, 3072
        s_add_u32 {T0}, {T0}, {T1}
        s_add_u32 {T0}, {T0}, {KV_OFF}
        v_lshlrev_b32 v{t[0]}, 4, {vL}
        v_mov_b32 v{t[4]}, 0
        v_mov_b32 v{t[5]}, 0
        v_mov_b32 v{t[6]}, 0
        v_mov_b32 v{t[7]}, 0
        buffer_store_dwordx4 {vr(t[4],4)}, v{t[0]}, {sWS}, {T0} offen sc1
        buffer_store_dwordx4 {vr(t[4],4)}, v{t[0]}, {sWS}, {T0} offen offset:1024 sc1
        buffer_store_dwordx4 {vr(t[4],4)}, v{t[0]}, {sWS}, {T0} offen offset:2048 sc1""")
        p.cond = False
        p(l + ":")
    hi, g1, r, c = t[0], t[1], t[2], t[3]
    p(f"""
    v_lshrrev_b32 v{hi}, 5, {vL}
    v_bfe_u32 v{g1}, {vL}, 4, 1
    v_bfe_u32 v{r}, {vL}, 2, 2
    v_and_b32 v{c}, 3, {vL}
    v_and_b32 v{t[4]}, 31, {vL}
    v_bfe_u32 v{t[5]}, {vL}, 1, 3
    v_xor_b32 v{t[5]}, v{t[5]}, v{hi}
    s_lshl_b32 {T0}, {RH}, 13
    v_lshl_add_u32 v{t[4]}, v{t[4]}, 7, {T0}
    v_lshl_add_u32 v{lX[0]}, v{t[5]}, 4, v{t[4]}
    v_xor_b32 v{lX[1]}, 32, v{lX[0]}
    v_xor_b32 v{lX[2]}, 64, v{lX[0]}
    v_xor_b32 v{lX[3]}, 96, v{lX[0]}
    """)
    for i in range(4): p(f"v_add_u32 v{lXh[i]}, 65536, v{lX[i]}")
    p(f"""
    v_lshlrev_b32 v{t[4]}, 3, v{c}
    v_lshl_add_u32 v{t[4]}, v{g1}, 5, v{t[4]}        ; g1*32 + c*8   (keep)
    v_lshl_add_u32 v{t[5]}, v{hi}, 3, v{r}           ; 8hi + r
    v_lshl_add_u32 v{t[6]}, v{t[5]}, 8, v{t[4]}
    """)
    if KV: p(f"v_xor_b32 v{t[7]}, {CH}, v{r}")
    else: p(f"v_sub_u32 v{t[7]}, {CH}, v{r}\nv_and_b32 v{t[7]}, 3, v{t[7]}")
    p(f"""
    v_lshl_add_u32 v{t[6]}, v{t[7]}, 6, v{t[6]}
    v_add_u32 v{lW[0]}, 16384, v{t[6]}
    v_xor_b32 v{lW[1]}, 128, v{lW[0]}
    v_add_u32 v{lWh[0]}, 65536, v{lW[0]}
    v_add_u32 v{lWh[1]}, 65536, v{lW[1]}
    v_lshrrev_b32 v{t[7]}, 1, v{r}
    v_xor_b32 v{t[6]}, {CH}, v{t[7]}
    v_lshl_add_u32 v{t[6]}, v{t[6]}, 6, v{t[4]}
    v_lshl_add_u32 v{t[6]}, v{t[5]}, 7, v{t[6]}
    v_add_u32 v{lB}, {REGB}, v{t[6]}
    v_lshl_add_u32 v{t[5]}, v{hi}, 2, v{r}
    v_xor_b32 v{t[7]}, {RH}, v{t[7]}
    v_lshl_add_u32 v{t[6]}, v{t[7]}, 6, v{t[4]}
    v_lshl_add_u32 v{t[6]}, v{t[5]}, 7, v{t[6]}
    s_mul_i32 {M0A2}, {WAVE}, {W2A_W}
    s_lshl_b32 {M0B2}, {WAVE}, 14
    s_add_u32 {M0B2}, {M0B2}, {REGB}
    v_add_u32 v{lW2A[0]}, {M0A2}, v{t[6]}
    v_xor_b32 v{lW2A[1]}, 64, v{lW2A[0]}
    v_add_u32 v{lW2B[0]}, {M0B2}, v{t[6]}
    v_xor_b32 v{lW2B[1]}, 64, v{lW2B[0]}
    s_lshl_b32 {M0B}, {WAVE}, 11
    s_add_u32 {M0B}, {M0B}, {REGB}
    """)
    p(f"""
    v_lshrrev_b32 v{t[6]}, 1, v{c}
    v_lshl_add_u32 v{t[6]}, v{g1}, 1, v{t[6]}
    v_lshlrev_b32 v{t[6]}, 3, v{t[6]}
    v_lshl_add_u32 v{t[6]}, v{t[5]}, 5, v{t[6]}
    s_lshl_b32 {T0}, {WAVE}, 10
    s_add_u32 {T0}, {T0}, {REGB}
    v_add_u32 v{vP}, {T0}, v{t[6]}
    """)
    p(f"""
    v_lshrrev_b32 v{t[4]}, 3, {vL}
    v_bfe_u32 v{t[5]}, {vL}, 2, 1
    v_xor_b32 v{t[5]}, v{t[5]}, v{g1}                ; b
    v_lshlrev_b32 v{t[6]}, 4, v{c}
    v_lshl_add_u32 v{t[7]}, v{t[5]}, 6, v{t[6]}      ; b*64 + sub*16
    s_lshl_b32 {T0}, {CT}, 7
    v_lshl_add_u32 v{vW2[0]}, v{t[4]}, 10, v{t[7]}
    v_add_u32 v{vW2[0]}, {T0}, v{vW2[0]}
    v_add_u32 v{vW2[1]}, 7168, v{vW2[0]}
    """)
    if KV:
        p(f"""
        s_mul_i32 {BLK}, {HG}, 3
        s_add_u32 {BLK}, {BLK}, 1
        s_lshr_b32 {BLK}, {BLK}, 1
        s_min_u32 {BLK}, {BLK}, 10
        s_add_u32 {BLK}, {BLK}, 32
        s_mov_b32 {NBLK}, 64
        s_bitcmp1_b32 {HG}, 0
        s_cselect_b32 {NBLK}, 0, {NBLK}
        s_cmp_eq_u32 {HG}, 6
        s_cselect_b32 {NBLK}, 0, {NBLK}
        v_mul_u32_u24 v{t[7]}, {NBLK}, v{t[5]}
        v_add_u32 v{t[7]}, v{t[7]}, v{t[6]}
        s_lshl_b32 {T0}, {BLK}, 6
        """)
    else:
        p(f"s_lshl_b32 {T0}, {HG}, 7")
    p(f"""
    s_mul_i32 {T1}, {WAVE}, {16 * WBS}
    s_add_u32 {T0}, {T0}, {T1}
    v_mul_u32_u24 v{t[4]}, {WBS}, v{t[4]}
    v_add3_u32 v{vWb[0]}, v{t[4]}, v{t[7]}, {T0}
    v_add_u32 v{vWb[1]}, {8 * WBS - 1024}, v{vWb[0]}
    v_lshlrev_b32 v{t[4]}, 4, {vL}
    s_lshl_b32 {T0}, {RT64}, 1
    s_add_u32 {T1}, {T0}, {CH}
    s_xor_b32 {T2}, {T1}, 1
    s_mul_i32 {T1}, {T1}, {A2_STRIDE}
    s_mul_i32 {T2}, {T2}, {A2_STRIDE}
    v_add_u32 v{vA2l[0]}, {T1}, v{t[4]}
    v_add_u32 v{vA2l[1]}, {T2}, v{t[4]}
    s_lshl_b32 {T0}, {RB}, 1
    s_add_u32 {T0}, {T0}, {RH}
    s_mul_i32 {T0}, {T0}, {2 * A2_STRIDE}
    v_add_u32 v{vA2s[0]}, {T0}, v{t[4]}
    v_add_u32 v{vA2s[1]}, {A2_STRIDE}, v{vA2s[0]}
    s_mov_b32 {LOG2E}, 0x3fb8aa3b
    s_mov_b32 s86, 0xffff0000
    s_mov_b32 s87, 0xffff0000
    s_mul_i32 {C2S}, {WAVE}, 6
    s_cmp_eq_u32 {WAVE}, 3
    s_cselect_b32 {C2S}, 17, {C2S}
    s_add_u32 {C2S}, {C2S}, 64
    s_cmp_ge_u32 {WAVE}, 2
    s_cselect_b32 {C2N}, 5, 6
    s_lshr_b32 {RHO2}, {RHO}, 2
    s_lshr_b32 {RHO3}, {RHO}, 1
    """)

    SEL = [208, 212]; WPHI = 216 if KV else 240
    KT = 224; VF = 240
    if KV:
        p(f"""
        v_and_b32 v{t[5]}, 1, {vL}
        v_mul_u32_u24 v{t[5]}, 0x3f80, v{t[5]}
        v_lshlrev_b32 v{t[5]}, 16, v{t[5]}
        v_and_b32 v{t[4]}, 1, {vL}
        v_xor_b32 v{t[4]}, 1, v{t[4]}
        v_mul_u32_u24 v{t[4]}, 0x3f80, v{t[4]}
        v_or_b32 v{t[4]}, v{t[4]}, v{t[5]}          ; val = 0x3f80 << 16*(n&1)
        v_bfe_u32 v{t[5]}, {vL}, 1, 4               ; (n>>1)&15 = g1*8 + t*4 + q
        v_lshlrev_b32 v{t[6]}, 3, v{hi}
        v_sub_u32 v{t[5]}, v{t[5]}, v{t[6]}
        """)
        for k in range(8):
            p(f"v_cmp_eq_u32 vcc, {k}, v{t[5]}\nv_cndmask_b32 v{SEL[0]+k}, 0, v{t[4]}, vcc")
    p(f"""
    v_bfe_u32 v{t[4]}, {vL}, 2, 1
    v_mul_u32_u24 v{t[4]}, 0x8000, v{t[4]}
    v_lshl_or_b32 v{vG[0]}, v{t[4]}, 16, v{t[4]}
    """)
    def reads1(s, tt):
        slot = s % 3
        lx = lXh if slot == 2 else lX; lw = lWh if slot == 2 else lW
        so = 0 if slot == 2 else slot * RING
        T = 4 * s + tt
        wb = WB[T & 1]
        L = []
        for bi in range(2):
            for u in range(2):
                L.append(Item(f"ds_read_b64_tr_b16 {vr(wb + 4*bi + 2*u, 2)}, v{lw[bi]} offset:{so + tt*4096 + u*1024}"))
            L.append(Item(f"ds_read_b128 {ar(128*bi + 4*T, 4)}, v{lx[tt]} offset:{so + bi*4096}", tag=f"r{T}"))
        return L
    def mf1(s, tt):
        T = 4 * s + tt; wb = WB[T & 1]; L = []
        for bi in range(2):
            for u in range(2):
                d = ACC1 + 16 * (2 * bi + u); cc = "0" if T == 0 else vr(d, 16)
                if KV and bi == 1: L.append(Item(f"{MF} {vr(d,16)}, {ar(128*u + 4*T, 4)}, {vr(wb+4*bi,4)}, {cc}"))
                else: L.append(Item(f"{MF} {vr(d,16)}, {vr(wb+4*bi,4)}, {ar(128*u + 4*T, 4)}, {cc}"))
        return L
    def kstep_code(i):
        if i < 16:
            return f"s_add_u32 {KS}, {RHO}, {i}\ns_and_b32 {KS}, {KS}, 15\ns_lshl_b32 {T3}, {WAVE}, 4\ns_add_u32 {KS}, {KS}, {T3}"
        if i < 22:
            return (f"s_add_u32 {KS}, {RHO2}, {i-16}\ns_cmp_ge_u32 {KS}, {C2N}\ns_cselect_b32 {T3}, {C2N}, 0\ns_sub_u32 {KS}, {KS}, {T3}\n"
                    f"s_add_u32 {KS}, {KS}, {C2S}")
        return f"s_add_u32 {KS}, {RHO3}, {i-22}\ns_and_b32 {KS}, {KS}, 7\ns_lshl_b32 {T3}, {WAVE}, 3\ns_add_u32 {KS}, {KS}, {T3}"
    def slot_of(i):
        if i < NA: return ("A", i)
        if i < NA + NB: return ("B", i - NA)
        if i < 2 * NA + NB: return ("A", i - NA - NB)
        return ("B", i - 2 * NA - NB)
    def skip21(q, fn):
        l = p.lab("skip")
        q(f"s_cmp_ge_u32 {WAVE}, 2\ns_cbranch_scc1 {l}")
        q.cond = True; fn(q); q.cond = False
        q(l + ":")
    def w2_dma(i):
        q = p.sub()
        def body(q):
            q(kstep_code(i))
            reg, sl = slot_of(i)
            q(f"s_lshl_b32 {T3}, {KS}, 14\ns_add_u32 m0, {M0A2 if reg == 'A' else M0B2}, {sl * 2048}")
            sr = sW2 if i < 22 else sWO
            q(f"buffer_load_dwordx4 v{vW2[0]}, {sr}, {T3} offen lds")
            q(f"buffer_load_dwordx4 v{vW2[1]}, {sr}, {T3} offen offset:1024 lds", tag=f"w2_{i}")
        if i == 21: skip21(q, body)
        else: body(q)
        return q.items
    def a2_ld(i):
        q = p.sub()
        def body(q):
            q(kstep_code(i))
            if i >= 22: q(f"s_add_u32 {KS}, {KS}, 86")
            q(f"s_lshl_b32 {T3}, {KS}, 10")
            q(f"buffer_load_dwordx4 {ar(8*i,4)}, v{vA2l[0]}, {sWS}, {T3} offen sc1")
            q(f"buffer_load_dwordx4 {ar(8*i+4,4)}, v{vA2l[1]}, {sWS}, {T3} offen sc1", tag=f"a2_{i}")
        if i == 21: skip21(q, body)
        else: body(q)
        return q.items

    p.stamp()
    p.waitvm("wphi"); p("s_barrier")
    p.stamp()
    for a_ in range(2):
        for u in range(2):
            p(f"ds_read_b64_tr_b16 {vr(WPHI + 4*a_ + 2*u, 2)}, v{vP} offset:{a_*512 + u*256}", tag="wphir")
    p.ext(reads1(0, 0))
    p.waitlg("wphir")
    for k in range(8): p(f"v_xor_b32 v{WPHI+k}, v{vG[0]}, v{WPHI+k}")
    pend = []
    for s in range(8):
        for tt in range(4):
            T = 4 * s + tt
            q = p.sub()
            if tt < 3:
                nxt = reads1(s, tt + 1)
                q.waitlg(f"r{T}")
            else:
                q.waitlg(f"r{T}")
                if s < 7: q.waitvm(f"st{s+1}")
                elif not KV: q.waitvm("st8")
                q("s_barrier")
                nxt = reads1(s + 1, 0) if s < 7 else []
                assert not pend
                if s + 3 <= 9: pend = stage_dma(s + 3)
                if s == 3:
                    q(f"v_mov_b32 v{t[0]}, 0\nglobal_load_dword v{vP}, v{t[0]}, s[22:23] sc1", tag="nonce")
            m = mf1(s, tt)
            for k in range(4):
                q.ext([m[k]])
                if k < 3: q.ext(nxt[2*k:2*k+2])
                if k in (1, 3) and pend: q.ext(pend.pop(0))
            p.ext(q.items)
            if s == 5 and tt == 2:
                l = p.lab("nl"); d = p.lab("nd")
                p.waitvm("nonce")
                p(f"s_mov_b32 {CNT}, 200000")
                p(l + ":")
                p(f"v_readfirstlane_b32 {NONCE}, v{vP}\ns_nop 3\ns_cmp_lg_u32 {NONCE}, 0\ns_cbranch_scc1 {d}")
                p.cond = True
                p(f"global_load_dword v{vP}, v{t[0]}, s[22:23] sc1\ns_waitcnt vmcnt(0)\ns_sub_u32 {CNT}, {CNT}, 1\ns_cbranch_scc0 {l}")
                p.cond = False
                p(d + ":")
                if KV:
                    l = p.lab("nz")
                    p(f"s_or_b32 {T0}, {RB}, {WAVE}\ns_cmp_lg_u32 {T0}, 0\ns_cbranch_scc1 {l}")
                    p.cond = True
                    p.flag(f"s_lshl_b32 {T0}, {HG}, 8\ns_add_u32 {T0}, {T0}, {F_Z}")
                    p.cond = False
                    p(l + ":")
    while pend: p.ext(pend.pop(0))
    p.stamp()

    def softmax(b):
        q = p.sub(); m1, m2 = t[0], t[1]
        q(f"""v_max3_f32 v{m1}, v{b}, v{b+1}, v{b+2}
        v_max3_f32 v{m2}, v{b+3}, v{b+4}, v{b+5}
        v_max3_f32 v{m1}, v{m1}, v{b+6}, v{b+7}
        v_max3_f32 v{m2}, v{m2}, v{b+8}, v{b+9}
        v_max3_f32 v{m1}, v{m1}, v{b+10}, v{b+11}
        v_max3_f32 v{m2}, v{m2}, v{b+12}, v{b+13}
        v_max3_f32 v{m1}, v{m1}, v{b+14}, v{b+15}
        v_max_f32 v{m1}, v{m1}, v{m2}
        v_mul_f32_e64 v{m1}, -v{m1}, {LOG2E}""")
        for k in range(8): q(f"v_pk_fma_f32 {vr(b+2*k,2)}, {vr(b+2*k,2)}, {LOG2EP}, {vr(m1,2)} op_sel_hi:[1,0,0]")
        for k in range(16): q(f"v_exp_f32 v{b+k}, v{b+k}")
        q(f"""v_pk_add_f32 {vr(t[0],2)}, {vr(b,2)}, {vr(b+2,2)}
        v_pk_add_f32 {vr(t[2],2)}, {vr(b+4,2)}, {vr(b+6,2)}
        v_pk_add_f32 {vr(t[0],2)}, {vr(t[0],2)}, {vr(b+8,2)}
        v_pk_add_f32 {vr(t[2],2)}, {vr(t[2],2)}, {vr(b+10,2)}
        v_pk_add_f32 {vr(t[0],2)}, {vr(t[0],2)}, {vr(b+12,2)}
        v_pk_add_f32 {vr(t[2],2)}, {vr(t[2],2)}, {vr(b+14,2)}
        v_pk_add_f32 {vr(t[0],2)}, {vr(t[0],2)}, {vr(t[2],2)}
        v_add_f32 v{t[0]}, v{t[0]}, v{t[1]}
        v_rcp_f32 v{t[0]}, v{t[0]}""")
        for k in range(8): q(f"v_pk_mul_f32 {vr(b+2*k,2)}, {vr(b+2*k,2)}, {vr(t[0],2)} op_sel_hi:[1,0]")
        for k in range(8): q(f"v_cvt_pk_bf16_f32 v{b+k}, v{b+2*k}, v{b+2*k+1}")
        return q.items
    def cvt8(dst, src, n=8):
        return [Item(f"v_cvt_pk_bf16_f32 v{dst+k}, v{src+2*k}, v{src+2*k+1}") for k in range(n)]
    def relu_store(src, u, soff, q):
        q.ext(cvt8(src, src))
        for k in range(8): q(f"v_pk_max_i16 v{src+k}, v{src+k}, 0")
        q(f"buffer_store_dwordx4 {vr(src,4)}, v{vA2s[u]}, {sWS}, {soff} offen sc1")
        q(f"buffer_store_dwordx4 {vr(src+4,4)}, v{vA2s[u]}, {sWS}, {soff} offen offset:1024 sc1", tag="hst")
    def pass2(extra_at):
        q = p.sub()
        def rd(T): return [Item(f"ds_read_b64_tr_b16 {vr(WB[T&1] + 2*u, 2)}, v{lB} offset:{T*2048 + u*512}", tag=f"b{T}") for u in range(2)]
        q.ext(rd(0))
        for T in range(32):
            if T in extra_at: q.ext(extra_at[T])
            if T == 15 and not KV:
                q.waitlg(f"b{T}"); q.waitvm("st9"); q("s_barrier")
            if T < 31: q.ext(rd(T + 1))
            q.waitlg(f"b{T}")
            if T == 31: q("s_barrier")
            for u in range(2):
                d = ACC2 + 16 * u; cc = "0" if T == 0 else vr(d, 16)
                q(f"{MF} {vr(d,16)}, {vr(WB[T&1],4)}, {ar(128*u + 4*T, 4)}, {cc}")
        return q.items

    if KV:
        f = p.sub()
        for u in range(2): f.ext(cvt8(KT + 8*u, ACC1 + 16*u))
        PB = [PP, PP + 16, PP + 32, PP]
        def pmf(i): return Item(f"{MF} {vr(PB[i],16)}, {vr(WPHI + 4*(i&1),4)}, {vr(KT + 4*i,4)}, 0")
        f.ext([pmf(0), pmf(1), pmf(2)])
        for u in range(2): f.ext(cvt8(VF + 8*u, ACC1 + 32 + 16*u))
        ONES = t[4]
        for k in range(4): f(f"v_mov_b32 v{ONES+k}, 0x3f803f80")
        D2 = [ACC2, ACC2 + 16]
        ACA = [ACC1, ACC1 + 16]; ACZ = [ACC1 + 32, ACC1 + 48]
        def tmf(i):
            d = D2[i & 1]
            return [Item(f"{MF} {vr(d,16)}, {vr(PB[i],4)}, {vr(SEL[0],4)}, 0"), Item(f"{MF} {vr(d,16)}, {vr(PB[i]+4,4)}, {vr(SEL[1],4)}, {vr(d,16)}")]
        def kvmf(i):
            d = D2[i & 1]; u = i >> 1; a_ = i & 1; L = []
            for k in range(2):
                cc = "0" if (u == 0 and k == 0) else vr(ACA[a_], 16)
                L.append(Item(f"{MF} {vr(ACA[a_],16)}, {vr(d+4*k,4)}, {vr(VF+8*u+4*k,4)}, {cc}"))
            for k in range(2):
                cc = "0" if (u == 0 and k == 0) else vr(ACZ[a_], 16)
                L.append(Item(f"{MF} {vr(ACZ[a_],16)}, {vr(ONES,4)}, {vr(d+4*k,4)}, {cc}"))
            return L
        for i in range(4):
            f.ext(softmax(PB[i]))
            if i > 0: f.ext(cvt8(D2[(i-1)&1], D2[(i-1)&1]))
            f.ext(tmf(i))
            if i == 0: f.ext([pmf(3)])
            if i > 0: f.ext(kvmf(i - 1))
        f.ext(cvt8(D2[1], D2[1])); f.ext(kvmf(3))
        groups = [w2_dma(i) for i in range(NA)]
        nv = len(f.items)
        p.ext(interleave(f.items, groups, [int((i + 0.3) * nv / NA) for i in range(NA)]))
        p.stamp()
        p(f"v_mov_b32 v{vFl}, 0")
        p.poll(f"s_lshl_b32 {T0}, {HG}, 8\ns_add_u32 {T0}, {T0}, {F_Z}", T0)
        KEEP = PP; SEND = PP + 8
        l1 = p.lab("rh1"); l2 = p.lab("rhd")
        p(f"s_mov_b32 s96, 0\ns_mov_b32 s97, -1\nv_cndmask_b32 v{PP+16}, v{ACZ[0]}, v{ACZ[1]}, s[96:97]")
        p(f"s_cmp_lg_u32 {RH}, 0\ns_cbranch_scc1 {l1}")
        for k in range(8): p(f"v_cndmask_b32 v{SEND+k}, v{ACA[0]+8+k}, v{ACA[1]+8+k}, {MK16}")
        for k in range(8): p(f"v_cndmask_b32 v{KEEP+k}, v{ACA[0]+k}, v{ACA[1]+k}, {MK16}")
        p(f"s_branch {l2}")
        p(l1 + ":")
        for k in range(8): p(f"v_cndmask_b32 v{SEND+k}, v{ACA[0]+k}, v{ACA[1]+k}, {MK16}")
        for k in range(8): p(f"v_cndmask_b32 v{KEEP+k}, v{ACA[0]+8+k}, v{ACA[1]+8+k}, {MK16}")
        p(l2 + ":")
        p(f"""s_lshl_b32 {T0}, {WAVE}, 11
        s_add_u32 {T0}, {T0}, {MISC}
        s_xor_b32 {T1}, {T0}, 4096
        v_lshl_add_u32 v{t[0]}, {vL}, 4, {T0}
        v_lshl_add_u32 v{t[1]}, {vL}, 4, {T1}
        ds_write_b128 v{t[0]}, {vr(SEND,4)}
        ds_write_b128 v{t[0]}, {vr(SEND+4,4)} offset:1024
        s_waitcnt lgkmcnt(0)""")
        p.waitvm("st9")
        p(f"""s_barrier
        ds_read_b128 {vr(SEND,4)}, v{t[1]}
        ds_read_b128 {vr(SEND+4,4)}, v{t[1]} offset:1024
        v_lshrrev_b32 v{t[2]}, 5, {vL}
        v_and_b32 v{t[3]}, 31, {vL}
        v_lshlrev_b32 v{t[3]}, 2, v{t[3]}
        v_lshl_add_u32 v{t[4]}, v{t[2]}, 7, v{t[3]}
        v_lshl_add_u32 v{t[3]}, v{t[2]}, 9, v{t[3]}
        s_lshl_b32 {T0}, {HG}, 1
        s_add_u32 {T0}, {T0}, {CH}
        s_mul_i32 {T0}, {T0}, {HP_STRIDE}
        s_add_u32 {T0}, {T0}, {KV_OFF}
        s_add_u32 {T1}, {T0}, 4096
        s_lshl_b32 {T2}, {RH}, 11
        s_add_u32 {T0}, {T0}, {T2}
        buffer_atomic_add_f32 v{PP+16}, v{t[4]}, {sWS}, {T1} offen
        s_waitcnt lgkmcnt(0)""")
        for k in range(4): p(f"v_pk_add_f32 {vr(KEEP+2*k,2)}, {vr(KEEP+2*k,2)}, {vr(SEND+2*k,2)}")
        for k in range(8):
            p(f"buffer_atomic_add_f32 v{KEEP+k}, v{t[3]}, {sWS}, {T0} offen offset:{(8*(k>>2) + (k&3))*128}", tag="atom")
        l = p.lab("nogate")
        p(f"s_cmp_lg_u32 {HG}, 6\ns_cbranch_scc1 {l}")
        p.cond = True
        p(f"""s_lshl_b32 {T0}, {WAVE}, 1
        s_add_u32 {T1}, {T0}, {SIG}
        s_add_u32 {T2}, {T1}, 1
        s_and_b32 {T1}, {T1}, 7
        s_and_b32 {T2}, {T2}, 7
        s_lshl_b32 {T1}, {T1}, 7
        s_lshl_b32 {T2}, {T2}, 7
        v_lshl_add_u32 v{t[0]}, {vL}, 1, {T1}
        v_lshl_add_u32 v{t[1]}, {vL}, 1, {T2}
        global_load_ushort v{t[4]}, v{t[0]}, s[18:19]
        global_load_ushort v{t[5]}, v{t[1]}, s[18:19]
        v_bfe_u32 v{t[2]}, {vL}, 1, 1
        v_xor_b32 v{t[2]}, 1, v{t[2]}
        v_lshlrev_b32 v{t[2]}, 6, v{t[2]}
        v_lshl_add_u32 v{t[2]}, {vL}, 7, v{t[2]}
        s_lshl_b32 {T0}, {WAVE}, 14
        s_add_u32 {T0}, {T0}, {REGB}
        v_add_u32 v{t[2]}, {T0}, v{t[2]}
        s_waitcnt vmcnt(0)
        ds_write_b16 v{t[2]}, v{t[4]}
        ds_write_b16 v{t[2]}, v{t[5]} offset:8192
        s_waitcnt lgkmcnt(0)
        s_barrier""")
        p.cond = False
        p(l + ":")
        p.stamp()
        q = p.sub()
        q.waitvm("atom")
        kq = K(role); kq.flag(f"s_lshl_b32 {T0}, {HG}, 1\ns_add_u32 {T0}, {T0}, {CH}\ns_lshl_b32 {T0}, {T0}, 8\ns_lshl_b32 {T1}, {RB}, 1\ns_add_u32 {T1}, {T1}, {RH}\ns_lshl_b32 {T1}, {T1}, 2\ns_add_u32 {T0}, {T0}, {T1}\ns_add_u32 {T0}, {T0}, {F_KVD}")
        q.ext(kq.items)
        p.ext(pass2({28: q.items}))
        p.stamp()
        for i in range(NA, NA + NB): p.ext(w2_dma(i))
        l1 = p.lab("gate"); l2 = p.lab("hdone")
        p(f"s_mul_i32 {T0}, {CH}, {NBLK}\ns_cmp_lg_u32 {T0}, 0\ns_cselect_b32 {T1}, 1, 0\ns_add_u32 {T1}, {T1}, {BLK}\ns_lshl_b32 {T1}, {T1}, 11")
        p(f"s_cmp_gt_u32 {CH}, {NBLK}\ns_cbranch_scc1 {l1}")
        p.cond = True
        for u in range(2): relu_store(ACC2 + 16*u, u, T1, p)
        p(f"s_branch {l2}")
        p(l1 + ":")
        p(f"s_cmp_lg_u32 {HG}, 6\ns_cbranch_scc1 {l2}")
        for u in range(2):
            p(f"""v_mul_f32_e64 v{t[u]}, -v{ACC2+16*u}, {LOG2E}
            v_exp_f32 v{t[u]}, v{t[u]}
            s_nop 0
            v_add_f32 v{t[u]}, 1.0, v{t[u]}
            v_rcp_f32 v{t[u]}, v{t[u]}""")
        p(f"""s_lshl_b32 {T0}, {RB}, 1
        s_add_u32 {T0}, {T0}, {RH}
        s_lshl_b32 {T0}, {T0}, 8
        s_add_u32 {T0}, {T0}, {G_OFF}
        v_lshlrev_b32 v{t[2]}, 2, {vL}
        s_mov_b32 exec_hi, 0
        buffer_store_dword v{t[0]}, v{t[2]}, {sWS}, {T0} offen sc1
        buffer_store_dword v{t[1]}, v{t[2]}, {sWS}, {T0} offen offset:128 sc1
        s_mov_b32 exec_hi, -1""")
        p.cond = False
        p(l2 + ":")
        p("s_waitcnt vmcnt(0)")
        hkflag = f"s_lshl_b32 {T0}, {RB}, 1\ns_add_u32 {T0}, {T0}, {RH}\ns_lshl_b32 {T0}, {T0}, 8\ns_lshl_b32 {T1}, {HG}, 1\ns_add_u32 {T1}, {T1}, {CH}\ns_lshl_b32 {T1}, {T1}, 2\ns_add_u32 {T0}, {T0}, {T1}\ns_add_u32 {T0}, {T0}, "
        p.flag(hkflag + str(F_HK))
    else:
        hkflag = f"s_lshl_b32 {T0}, {RB}, 1\ns_add_u32 {T0}, {T0}, {RH}\ns_lshl_b32 {T0}, {T0}, 8\ns_lshl_b32 {T1}, {HG}, 1\ns_add_u32 {T1}, {T1}, {CH}\ns_lshl_b32 {T1}, {T1}, 2\ns_add_u32 {T0}, {T0}, {T1}\ns_add_u32 {T0}, {T0}, "
        p(f"s_lshl_b32 {BLK}, {HG}, 2\ns_add_u32 {BLK}, {BLK}, {CH}\ns_lshl_b32 {BLK}, {BLK}, 11\ns_add_u32 {NBLK}, {BLK}, 4096")
        for bi in range(2):
            for u in range(2): relu_store(ACC1 + 16*(2*bi+u), u, BLK if bi == 0 else NBLK, p)
        p.stamp()
        ex = {2 + 3*i: w2_dma(i) for i in range(NA)}
        q = p.sub(); q.waitvm("hst")
        kq = K(role); kq.flag(hkflag + str(F_HQ)); q.ext(kq.items)
        ex[30] = q.items
        p.ext(pass2(ex))
        p.stamp()
        for i in range(NA, NA + NB): p.ext(w2_dma(i))
    p(f"v_and_b32 v{vFl}, 15, {vL}\nv_lshlrev_b32 v{vFl}, 2, v{vFl}")
    p.poll(f"s_lshl_b32 {T0}, {RT64}, 8\ns_add_u32 {T0}, {T0}, {F_HQ}", T0)
    p.stamp()
    a2g = [a2_ld(i) for i in range(16)]
    if KV:
        for g in a2g: p.ext(g)
    else:
        f = p.sub()
        for u in range(2): f.ext(cvt8(KT + 8*u, ACC2 + 16*u))
        for i in range(4): f(f"{MF} {vr(PP+16*i,16)}, {vr(WPHI + 4*(i&1),4)}, {vr(KT + 4*i,4)}, 0")
        for i in range(4): f.ext(softmax(PP + 16*i))
        nv = len(f.items)
        p.ext(interleave(f.items, a2g, [int(i * nv / 16) for i in range(16)]))
    p.stamp()
    ACC3 = 160
    def rd2(i):
        reg, sl = slot_of(i); base = lW2A if reg == "A" else lW2B
        return [Item(f"ds_read_b64_tr_b16 {vr(WB[i&1] + 4*nb + 2*u, 2)}, v{base[nb]} offset:{sl*2048 + u*1024}", tag=f"c{i}", cond=(i == 21)) for nb in range(2) for u in range(2)]
    def steps(lo, hi_):
        p.waitvm(f"w2_{lo}"); p.ext(rd2(lo))
        for i in range(lo, hi_):
            acc = ACC1 if i < 22 else ACC3
            m = []
            for nb in range(2):
                for u in range(2):
                    d = acc + 16 * (2*nb + u); cc = "0" if i in (0, 22) else vr(d, 16)
                    m.append(Item(f"{MF} {vr(d,16)}, {vr(WB[i&1]+4*nb,4)}, {ar(8*i+4*u,4)}, {cc}"))
            if i == 21:
                l = p.lab("s21")
                p(f"s_cmp_ge_u32 {WAVE}, 2\ns_cbranch_scc1 {l}")
                p("s_waitcnt vmcnt(0)")
                p.ext(rd2(21)); p("s_waitcnt lgkmcnt(0)")
                p.ext(m)
                p(l + ":")
                continue
            p.waitlg(f"c{i}")
            p.waitvm(f"a2_{i}")
            nxt = []
            if i + 1 < hi_ and i + 1 != 21:
                p.waitvm(f"w2_{i+1}"); nxt = rd2(i + 1)
            dma = w2_dma(i + NA + NB) if i + NA + NB < 30 else []
            p.ext([m[0]] + nxt[0:2] + [m[1]] + nxt[2:4] + [m[2]] + dma + [m[3]])
    steps(0, 16)
    p.stamp()
    p.poll(f"s_lshl_b32 {T0}, {RT64}, 8\ns_add_u32 {T0}, {T0}, {F_HK}", T0)
    p.stamp()
    for i in range(16, 22): p.ext(a2_ld(i))
    p(f"""s_lshl_b32 {T0}, {RT64}, 8
    s_lshl_b32 {T1}, {CH}, 7
    s_add_u32 {T0}, {T0}, {G_OFF}
    s_add_u32 {T1}, {T1}, {T0}
    s_xor_b32 {T2}, {T1}, 128
    v_and_b32 v{t[0]}, 31, {vL}
    v_lshlrev_b32 v{t[0]}, 2, v{t[0]}
    buffer_load_dword v{vG[0]}, v{t[0]}, {sWS}, {T1} offen sc1
    buffer_load_dword v{vG[1]}, v{t[0]}, {sWS}, {T2} offen sc1""", tag="gld")
    if not KV:
        p(f"v_and_b32 v{vFl}, 31, {vL}\nv_lshlrev_b32 v{vFl}, 2, v{vFl}")
        p.poll(f"s_lshl_b32 {T0}, {HG}, 1\ns_add_u32 {T0}, {T0}, {CH}\ns_lshl_b32 {T0}, {T0}, 8\ns_add_u32 {T0}, {T0}, {F_KVD}", T0)
        p.stamp()
        p(f"""v_lshrrev_b32 v{t[0]}, 5, {vL}
        v_lshl_add_u32 v{t[1]}, v{t[0]}, 11, v{vFl}       ; hi*2048 + l31*4
        v_bfe_u32 v{t[2]}, {vL}, 4, 1
        v_xor_b32 v{t[2]}, 1, v{t[2]}
        v_lshlrev_b32 v{t[2]}, 7, v{t[2]}
        v_lshl_add_u32 v{t[2]}, v{t[0]}, 6, v{t[2]}       ; (1-g1)*128 + hi*64
        s_lshl_b32 {T0}, {HG}, 1
        s_add_u32 {T0}, {T0}, {CH}
        s_mul_i32 {T0}, {T0}, {HP_STRIDE}
        s_add_u32 {T0}, {T0}, {KV_OFF}
        s_add_u32 {T1}, {T0}, 4096
        v_and_b32 v{vFl}, 15, {vL}
        v_lshlrev_b32 v{vFl}, 2, v{vFl}""")
        for k in range(16): p(f"buffer_load_dword v{ACC2+k}, v{t[1]}, {sWS}, {T0} offen offset:{k*128} sc1")
        for k in range(4): p(f"buffer_load_dwordx4 {vr(ACC2+16+4*k,4)}, v{t[2]}, {sWS}, {T1} offen offset:{k*16} sc1", tag="kvld")
        p.waitvm("kvld")
        p.ext(cvt8(ACC2, ACC2)); p.ext(cvt8(ACC2 + 16, ACC2 + 16))
        for k in range(8): p(f"v_cndmask_b32 v{KT+k}, v{ACC2+k}, v{ACC2+16+k}, {MK16}")
        for k in range(8): p(f"v_cndmask_b32 v{KT+8+k}, v{ACC2+16+k}, v{ACC2+k}, {MK16}")
        p(f"s_lshl_b32 {T0}, {HG}, 2\ns_lshl_b32 {T1}, {CH}, 1\ns_add_u32 {T0}, {T0}, {T1}\ns_add_u32 {T0}, {T0}, 86\ns_lshl_b32 {T0}, {T0}, 10")
        def nmf(i):
            d = ACC2 + 16 * (i & 1); a_ = i & 1
            p(f"{MF} {vr(d,16)}, {vr(KT+8*a_,4)}, {vr(PP+16*i,4)}, 0")
            p(f"{MF} {vr(d,16)}, {vr(KT+8*a_+4,4)}, {vr(PP+16*i+4,4)}, {vr(d,16)}")
        def ofin(i):
            d = ACC2 + 16 * (i & 1); a_ = i & 1; u = i >> 1
            den = d + 8 if a_ == 0 else d; num = d + 8 * a_; o = PP + 16 * i + 8
            p(f"v_add_f32 v{t[4]}, 0x358637bd, v{den}\nv_rcp_f32 v{t[4]}, v{t[4]}")
            for k in range(4): p(f"v_pk_mul_f32 {vr(num+2*k,2)}, {vr(num+2*k,2)}, {vr(t[4],2)} op_sel_hi:[1,0]")
            p.ext(cvt8(o, num, 4))
            p(f"buffer_store_dwordx4 {vr(o,4)}, v{vA2s[u]}, {sWS}, {T0} offen offset:{a_*1024} sc1", tag="ost")
        nmf(0); nmf(1); ofin(0); nmf(2); ofin(1); nmf(3); ofin(2); ofin(3)
        p.stamp()
    steps(16, 22)
    if not KV:
        p.waitvm("ost")
        p.flag(hkflag + str(F_O))
    p.stamp()
    p.poll(f"s_lshl_b32 {T0}, {RT64}, 8\ns_add_u32 {T0}, {T0}, {F_O}", T0)
    p.stamp()
    for i in range(22, 30): p.ext(a2_ld(i))
    p("s_barrier")
    p.waitvm("gld")
    p(f"v_sub_f32 v{t[0]}, 1.0, v{vG[0]}\nv_sub_f32 v{t[2]}, 1.0, v{vG[1]}\nv_mov_b32 v{t[4]}, v{vG[0]}\nv_mov_b32 v{t[6]}, v{vG[1]}")
    for sl in range(4):
        for k in range(8): p(f"v_pk_mul_f32 {vr(ACC1+16*sl+2*k,2)}, {vr(ACC1+16*sl+2*k,2)}, {vr(t[2*(sl&1)],2)} op_sel_hi:[1,0]")
    steps(22, 30)
    p.stamp()
    for sl in range(1, 4):
        p(f"s_xor_b32 {T0}, {WAVE}, {sl}\ns_lshl_b32 {T0}, {T0}, 14\ns_add_u32 {T0}, {T0}, {REGB + 4096 + (sl-1)*4096}\nv_lshl_add_u32 v{WB[0]+sl}, {vL}, 4, {T0}")
    p(f"s_add_u32 {T0}, {M0B2}, 4096\nv_lshl_add_u32 v{WB[0]}, {vL}, 4, {T0}")
    for sl in (1, 2, 3, 0):
        for k in range(8):
            p(f"v_pk_fma_f32 {vr(ACC1+16*sl+2*k,2)}, {vr(ACC3+16*sl+2*k,2)}, {vr(t[4+2*(sl&1)],2)}, {vr(ACC1+16*sl+2*k,2)} op_sel_hi:[1,0,1]")
        if sl:
            for k in range(4): p(f"ds_write_b128 v{WB[0]+sl}, {vr(ACC1+16*sl+4*k,4)} offset:{k*1024}")
    p("s_waitcnt lgkmcnt(0)\ns_barrier")
    for sl in range(1, 4):
        for k in range(4): p(f"ds_read_b128 {vr(ACC1+16*sl+4*k,4)}, v{WB[0]} offset:{(sl-1)*4096 + k*1024}", tag=f"red{sl}")
    p(f"""s_lshl_b32 {T0}, {RT64}, 6
    s_lshl_b32 {T1}, {CH}, 5
    s_add_u32 {T0}, {T0}, {T1}
    s_lshl_b32 {T0}, {T0}, 10
    s_lshl_b32 {T1}, {CT}, 7
    s_add_u32 {T0}, {T0}, {T1}
    s_lshl_b32 {T1}, {RH}, 6
    s_add_u32 {T0}, {T0}, {T1}
    v_and_b32 v{t[0]}, 31, {vL}
    v_lshrrev_b32 v{t[1]}, 5, {vL}
    v_lshlrev_b32 v{t[1]}, 4, v{t[1]}
    v_lshl_add_u32 v{t[0]}, v{t[0]}, 10, v{t[1]}""")
    for sl in range(1, 4):
        p.waitlg(f"red{sl}")
        for k in range(8): p(f"v_pk_add_f32 {vr(ACC1+2*k,2)}, {vr(ACC1+2*k,2)}, {vr(ACC1+16*sl+2*k,2)}")
    p.ext(cvt8(ACC1, ACC1))
    p(f"""v_permlane32_swap_b32 v{ACC1}, v{ACC1+2}
    v_permlane32_swap_b32 v{ACC1+1}, v{ACC1+3}
    v_permlane32_swap_b32 v{ACC1+4}, v{ACC1+6}
    v_permlane32_swap_b32 v{ACC1+5}, v{ACC1+7}
    buffer_store_dwordx4 {vr(ACC1,4)}, v{t[0]}, {sOUT}, {T0} offen
    buffer_store_dwordx4 {vr(ACC1+4,4)}, v{t[0]}, {sOUT}, {T0} offen offset:32""")
    if STAMPS:
        p.stamp()
        p("s_waitcnt vmcnt(0)")
        p.stamp()
        p(f"""s_memrealtime s[92:93]
        s_waitcnt lgkmcnt(0)
        v_writelane_b32 v{vStamp}, s90, 62
        v_writelane_b32 v{vStamp}, s92, 63
        s_lshl_b32 {T0}, s2, 2
        s_add_u32 {T0}, {T0}, {WAVE}
        s_lshl_b32 {T0}, {T0}, 8
        s_add_u32 {T0}, {T0}, {STAMP_OFF}
        v_lshlrev_b32 v{t[0]}, 2, {vL}
        buffer_store_dword v{vStamp}, v{t[0]}, {sWS}, {T0} offen""")
    p("s_endpgm")
    return p.items

def generate():
    e = entry()
    assert len(hazard_pad(e)) == len(e)
    kv = hazard_pad(e + resolve_waits(build("KV")))[len(e):]
    q = hazard_pad(e + [Item("L_Q:")] + resolve_waits(build("Q")))[len(e):]
    body = render(e) + render(kv) + render(q) + "L_end:\n    s_endpgm\n"
    return (HEADER + f"; @launch grid=(256,1,1) block=(256,1,1) lds={LDS_BYTES}\n"
            + '.amdgcn_target "amdgcn-amd-amdhsa--gfx950"\n.text\n' + kernel_open(KNAME) + body
            + '.section .rodata,"a"\n' + descriptor(KNAME, 256, 256, 102))

if __name__ == "__main__":
    out = sys.argv[1]
    STAMPS = len(sys.argv) > 2 and sys.argv[2] == "stamps"
    open(out, "w").write(generate())
```

```python
import sys
from gcore import *
from ag import HEADER, kernel_open, descriptor, KNAME

class O:
    stamps = False
    sig = "d1"
    codepf = True
    kvd_T = 27
    hq_T = 26
    nW2feat = 6
    hk_issue = 8; hk_check = 11
    q_steps_before_kvd = 4
    a2_after_kv = 3
    outflag = ""
    kv_w2q = 2; q_w2q = 2
A2_STRIDE = 118 * 1024
KV_OFF = 8 << 20; HP_STRIDE = 6144
G_OFF = 9 << 20
F_OFF = 10 << 20
F_HQ = F_OFF; F_HK = F_OFF + 8192; F_O = F_OFF + 16384; F_KVD = F_OFF + 24576; F_Z = F_OFF + 32768
STAMP_OFF = 200 << 20
RING = 32768; REGB = 98304
NA = 10; W2A_W = NA * 2048; MISC = 4 * W2A_W
NB = 8
LDS_BYTES = 163840
sX, sWA, sWB, sW2, sWO, sWS, sOUT = "s[28:31]", "s[32:35]", "s[36:39]", "s[40:43]", "s[44:47]", "s[48:51]", "s[52:55]"
WAVE, RB, HG, SIG, RH, CH, RT64, CT, NONCE, RHO = "s56", "s57", "s58", "s59", "s60", "s61", "s62", "s63", "s64", "s65"
XSO, WSO, T0, T1, T2, T3, CNT = "s66", "s67", "s68", "s69", "s70", "s71", "s72"
M0X, M0W, M0B, M0A2, M0B2 = "s73", "s74", "s75", "s76", "s77"
C2S, C2NW, C2NA, SW, SA = "s78", "s79", "s80", "s81", "s82"
BLK, NBLK = "s83", "s84"
WASR = "s85"
MK16 = "s[86:87]"
LOG2E = "s98"; LOG2EP = "s[98:99]"
FLO = "s100"
FLC = "s101"
HPB = "s26"
ROLEM = "s[96:97]"
vL = "v1"
vXs = [2, 3, 4, 5]; vWs = [6, 7, 8, 9]; vWb = [10, 11]; vW2 = [12, 13]
lX = [14, 15, 16, 17]; lXh = [18, 19, 20, 21]; lW = [22, 23]; lWh = [24, 25]; lB = 26
lW2A = [27, 28]; lW2B = [29, 30]
vA2l = [31, 32]; vA2s = [33, 34]; vFl = 35; vP = 36; vStamp = 37; vG = [38, 39]
WB = [40, 48]
vT = [56, 57, 58, 59, 60, 61, 62, 63]
ACC1 = 64; ACC2 = 128; PP = 160; ACC3 = 160
def vr(b, n): return f"v[{b}:{b+n-1}]"
def ar(b, n): return f"a[{b}:{b+n-1}]"
MF = "v_mfma_f32_32x32x16_bf16"
t = vT

class K(Prog):
    nl = 0
    def __init__(self, role):
        super().__init__(); self.role = role; self.nst = 1; self.names = ["start"]
    def sub(self):
        q = K(self.role); q.cond = self.cond; q.parent = getattr(self, "parent", self); return q
    def lab(self, p):
        K.nl += 1; return f"L{self.role}_{p}{K.nl}"
    def stamp(self, name):
        if not O.stamps: return
        r = getattr(self, "parent", self)
        self(f"s_memtime s[88:89]\ns_memrealtime s[90:91]\ns_waitcnt lgkmcnt(0)\nv_writelane_b32 v{vStamp}, s88, {r.nst}\nv_writelane_b32 v{vStamp}, s90, {32 + r.nst}")
        r.nst += 1; r.names.append(name)
    def poll_issue(self, soff, tag, off=0):
        self(f"buffer_load_dword v{vP}, v{vFl}, {sWS}, {soff} offen offset:{off} sc1", tag=tag)
    def poll_check(self, soff, tag, off=0):
        l = self.lab("poll"); d = self.lab("pdone")
        self.waitvm(tag)
        self(f"s_mov_b32 {CNT}, 400000")
        self(l + ":")
        self(f"v_cmp_ne_u32 vcc, {NONCE}, v{vP}\ns_nop 1\ns_cbranch_vccz {d}")
        c = self.cond; self.cond = True
        self(f"""buffer_load_dword v{vP}, v{vFl}, {sWS}, {soff} offen offset:{off} sc1
        s_waitcnt vmcnt(0)
        s_sub_u32 {CNT}, {CNT}, 1
        s_cbranch_scc0 {l}""")
        self.cond = c
        self(d + ":")
    def flag(self, soff):
        self(f"""v_mov_b32 v{t[6]}, 0
        v_mov_b32 v{t[7]}, {NONCE}
        s_mov_b64 exec, 1
        buffer_store_dword v{t[7]}, v{t[6]}, {sWS}, {soff} offen sc1
        s_mov_b64 exec, -1""")

def srd(p, name, ptr, size):
    b = int(name[2:name.index(":")])
    p(f"s_mov_b32 s{b}, s{ptr}\ns_mov_b32 s{b+1}, s{ptr+1}\ns_mov_b32 s{b+2}, {size}\ns_mov_b32 s{b+3}, 0x20000")

def stage_dma(p, s, WAS, WBS):
    gs = []
    if s < 8:
        q = p.sub()
        q(f"s_add_u32 {T0}, {SIG}, {s}\ns_and_b32 {T0}, {T0}, 7\ns_lshl_b32 {XSO}, {T0}, 7\ns_mul_i32 {WSO}, {T0}, {WASR}")
        q(f"s_add_u32 m0, {M0X}, {(s % 3) * RING}")
        for i in range(4):
            q(f"buffer_load_dwordx4 v{vXs[i]}, {sX}, {XSO} offen offset:{i*1024} lds")
            gs.append(q.items); q = p.sub()
        q(f"s_add_u32 m0, {M0W}, {(s % 3) * RING}")
        for i in range(4):
            q(f"buffer_load_dwordx4 v{vWs[i]}, {sWA}, {WSO} offen offset:{i*1024} lds", tag=f"st{s}")
            gs.append(q.items); q = p.sub()
    else:
        for cs in range((s - 8) * 4, (s - 8) * 4 + 4):
            q = p.sub()
            q(f"s_add_u32 {T0}, {SIG}, {cs}\ns_and_b32 {T0}, {T0}, 7\ns_mul_i32 {WSO}, {T0}, {64 * WBS}")
            q(f"s_add_u32 m0, {M0B}, {cs * 8192}")
            for i in range(2):
                q(f"buffer_load_dwordx4 v{vWb[i]}, {sWB}, {WSO} offen offset:{i*1024} lds", tag=f"st{s}")
                gs.append(q.items); q = p.sub()
    return gs

def entry():
    p = K("E")
    p(f"""
    s_cmp_ge_u32 s2, 256
    s_cbranch_scc1 L_end
    {"s_memrealtime s[26:27]" if O.stamps else ""}
    s_load_dwordx16 s[4:19], s[0:1], 0
    s_load_dwordx4 s[20:23], s[0:1], 64
    s_load_dwordx2 s[24:25], s[0:1], 80
    v_lshrrev_b32 v2, 6, v0
    v_and_b32 {vL}, 63, v0
    v_readfirstlane_b32 {WAVE}, v2
    s_lshr_b32 {T0}, s2, 3               ; j
    s_and_b32 {CT}, {T0}, 7
    s_lshr_b32 {T2}, s2, 6               ; j>>3
    """)
    if O.codepf:
        p.cond = True
        p(f"""
        s_getpc_b64 s[88:89]
        L_pc:
        s_cmp_lg_u32 {CT}, 0
        s_cbranch_scc1 L_nopf
        s_mov_b32 {T1}, L_KV-L_pc
        s_cmp_ge_u32 s2, 128
        s_cselect_b32 {T1}, L_Q-L_pc, {T1}
        s_and_b32 {T3}, {T2}, 1
        s_lshl_b32 {T3}, {T3}, 2
        s_add_u32 {T3}, {T3}, {WAVE}
        s_mul_i32 {T3}, {T3}, 2560
        s_add_u32 {T1}, {T1}, {T3}
        v_lshl_add_u32 v253, {vL}, 6, {T1}
        v_min_u32 v253, L_end-L_pc, v253
        s_mov_b32 exec_hi, 0xff
        global_load_dword v255, v253, s[88:89]
        s_mov_b32 exec_hi, -1
        L_nopf:
        """)
        p.cond = False
    p(f"""
    s_and_b32 {T1}, s2, 1
    s_lshl_b32 {T1}, {T1}, 3
    s_add_u32 {RB}, {T1}, {CT}
    s_and_b32 {T1}, s2, 6
    s_and_b32 {T3}, {T2}, 1
    s_add_u32 {HG}, {T1}, {T3}
    """)
    if O.sig == "d1": p(f"s_lshl_b32 {T3}, {T2}, 1\ns_add_u32 {SIG}, {CT}, {T3}")
    elif O.sig == "d2": p(f"s_and_b32 {SIG}, {CT}, 3\ns_lshl_b32 {SIG}, {SIG}, 1\ns_lshl_b32 {T3}, {T2}, 2\ns_add_u32 {SIG}, {SIG}, {T3}")
    elif O.sig == "d2b": p(f"s_and_b32 {SIG}, {CT}, 6\ns_lshl_b32 {T3}, {T2}, 1\ns_add_u32 {SIG}, {SIG}, {T3}")
    elif O.sig == "d4": p(f"s_and_b32 {SIG}, {CT}, 1\ns_lshl_b32 {SIG}, {SIG}, 2\ns_lshl_b32 {T3}, {T2}, 2\ns_add_u32 {SIG}, {SIG}, {T3}")
    elif O.sig == "d4b": p(f"s_and_b32 {SIG}, {CT}, 1\ns_lshl_b32 {SIG}, {SIG}, 2\ns_lshl_b32 {T3}, {T2}, 1\ns_add_u32 {SIG}, {SIG}, {T3}")
    elif O.sig == "d0": p(f"s_mov_b32 {SIG}, 0")
    p(f"""
    s_and_b32 {SIG}, {SIG}, 7
    v_lshrrev_b32 v{t[0]}, 3, {vL}          ; row8
    v_and_b32 v{t[1]}, 7, {vL}              ; pos
    v_lshrrev_b32 v{t[2]}, 4, {vL}          ; l>>4
    v_xor_b32 v{t[1]}, v{t[1]}, v{t[2]}
    s_lshl_b32 {T0}, {RB}, 7
    s_lshl_b32 {T1}, {WAVE}, 5
    s_add_u32 {T0}, {T0}, {T1}
    v_add_u32 v{t[3]}, {T0}, v{t[0]}
    v_lshlrev_b32 v{t[3]}, 10, v{t[3]}
    v_lshl_add_u32 v{vXs[0]}, v{t[1]}, 4, v{t[3]}
    v_xor_b32 v{vXs[1]}, 64, v{vXs[0]}
    v_add_u32 v{vXs[1]}, 7168, v{vXs[1]}
    v_add_u32 v{vXs[2]}, 14336, v{vXs[0]}
    v_add_u32 v{vXs[3]}, 14336, v{vXs[1]}
    s_lshl_b32 {M0X}, {WAVE}, 12
    s_lshl_b32 {XSO}, {SIG}, 7
    s_mov_b32 m0, {M0X}
    s_mov_b32 s30, 2097152
    s_mov_b32 s31, 0x20000
    v_bfe_u32 v{t[4]}, {vL}, 2, 2           ; p
    v_and_b32 v{t[5]}, 3, {vL}              ; sub
    v_xor_b32 v{t[6]}, v{t[4]}, v{t[2]}     ; b (KV)
    v_add_u32 v{t[4]}, v{t[4]}, v{t[2]}
    v_and_b32 v{t[4]}, 3, v{t[4]}           ; b (Q)
    v_lshlrev_b32 v{t[4]}, 6, v{t[4]}
    v_and_b32 v{t[7]}, 1, v{t[6]}
    v_lshrrev_b32 v{t[6]}, 1, v{t[6]}
    v_lshlrev_b32 v{t[6]}, 10, v{t[6]}
    v_lshl_add_u32 v{t[6]}, v{t[7]}, 6, v{t[6]}
    s_waitcnt lgkmcnt(0)
    s_mov_b32 s28, s4
    s_mov_b32 s29, s5
    """)
    for i in range(4):
        p(f"buffer_load_dwordx4 v{vXs[i]}, {sX}, {XSO} offen offset:{i*1024} lds")
    p(f"""
    s_lshl_b32 {T0}, {HG}, 7
    s_mov_b32 s34, 1572864
    s_mov_b32 {T3}, 3072
    s_cmp_ge_u32 s2, 128
    s_cselect_b64 {ROLEM}, -1, 0
    s_cselect_b32 s32, s14, s6
    s_cselect_b32 s33, s15, s7
    s_cselect_b32 s34, 1409024, s34
    s_cselect_b32 {T3}, 2752, {T3}
    s_cselect_b32 {T1}, {T0}, 1024
    s_mov_b32 s35, 0x20000
    v_cndmask_b32 v{t[6]}, v{t[6]}, v{t[4]}, {ROLEM}
    v_lshl_add_u32 v{t[6]}, v{t[5]}, 4, v{t[6]}
    s_add_u32 {T0}, {T0}, {T1}               ; KV: hg*128+1024 ; Q: hg*256
    s_lshl_b32 {T1}, {T3}, 4
    s_mul_i32 {T1}, {T1}, {WAVE}
    s_add_u32 {T0}, {T0}, {T1}
    v_mul_u32_u24 v{t[7]}, {T3}, v{t[2]}
    v_add3_u32 v{vWs[0]}, v{t[6]}, v{t[7]}, {T0}
    s_lshl_b32 {T1}, {T3}, 2
    s_sub_u32 {T1}, {T1}, 1024
    v_add_u32 v{vWs[1]}, {T1}, v{vWs[0]}
    v_add_u32 v{vWs[2]}, {T1}, v{vWs[1]}
    v_add_u32 v{vWs[3]}, {T1}, v{vWs[2]}
    s_lshl_b32 {WASR}, {T3}, 6
    s_mul_i32 {WSO}, {SIG}, {WASR}
    s_add_u32 {M0W}, {M0X}, 16384
    s_mov_b32 m0, {M0W}
    s_lshr_b32 {RH}, {WAVE}, 1
    """)
    for i in range(4):
        p(f"buffer_load_dwordx4 v{vWs[i]}, {sWA}, {WSO} offen offset:{i*1024} lds", tag="st0")
    p(f"""
    s_and_b32 {CH}, {WAVE}, 1
    s_mov_b32 s92, s8
    s_mov_b32 s93, s9
    s_mov_b32 s94, 16384
    s_mov_b32 s95, 0x20000
    s_lshl_b32 {T0}, {HG}, 11
    s_lshl_b32 {T1}, {CH}, 10
    s_add_u32 {T0}, {T0}, {T1}
    s_lshl_b32 {T1}, {WAVE}, 10
    s_add_u32 m0, {T1}, {REGB}
    v_lshlrev_b32 v{t[0]}, 4, {vL}
    buffer_load_dwordx4 v{t[0]}, s[92:95], {T0} offen lds
    """, tag="wphi")
    st1 = stage_dma(p, 1, 0, 0)
    for g in st1[:3]: p.ext(g)
    if O.stamps:
        p(f"v_mov_b32 v{vStamp}, 0\ns_memtime s[88:89]\ns_memrealtime s[90:91]\ns_waitcnt lgkmcnt(0)\nv_writelane_b32 v{vStamp}, s88, 0\nv_writelane_b32 v{vStamp}, s90, 32\nv_writelane_b32 v{vStamp}, s26, 63")
    p(f"""
    s_and_b32 {T1}, s2, 7
    s_lshl_b32 {T1}, {T1}, 2
    s_add_u32 {RT64}, {T1}, {T2}
    s_lshl_b32 {T3}, {T2}, 1
    s_add_u32 {RHO}, {CT}, {T3}
    s_lshl_b32 {RHO}, {RHO}, 1
    s_and_b32 {RHO}, {RHO}, 15
    """)
    srd(p, sWS, 24, 0x10000000)
    srd(p, sW2, 16, 1409024)
    srd(p, sWO, 10, 524288)
    srd(p, sOUT, 20, 2097152)
    hi, g1, r, c = t[0], t[1], t[2], t[3]
    p(f"""
    v_lshrrev_b32 v{hi}, 5, {vL}
    v_bfe_u32 v{g1}, {vL}, 4, 1
    v_bfe_u32 v{r}, {vL}, 2, 2
    v_and_b32 v{c}, 3, {vL}
    v_and_b32 v{t[4]}, 31, {vL}
    v_bfe_u32 v{t[5]}, {vL}, 1, 3
    v_xor_b32 v{t[5]}, v{t[5]}, v{hi}
    s_lshl_b32 {T0}, {RH}, 13
    v_lshl_add_u32 v{t[4]}, v{t[4]}, 7, {T0}
    v_lshl_add_u32 v{lX[0]}, v{t[5]}, 4, v{t[4]}
    v_xor_b32 v{lX[1]}, 32, v{lX[0]}
    v_xor_b32 v{lX[2]}, 64, v{lX[0]}
    v_xor_b32 v{lX[3]}, 96, v{lX[0]}
    """)
    for i in range(4): p(f"v_add_u32 v{lXh[i]}, 65536, v{lX[i]}")
    p(f"""
    v_lshlrev_b32 v{t[4]}, 3, v{c}
    v_lshl_add_u32 v{t[4]}, v{g1}, 5, v{t[4]}        ; g1*32 + c*8   (keep)
    v_lshl_add_u32 v{t[5]}, v{hi}, 3, v{r}           ; 8hi + r
    v_lshl_add_u32 v{t[6]}, v{t[5]}, 8, v{t[4]}
    v_xor_b32 v{t[7]}, {CH}, v{r}
    v_sub_u32 v{lW[1]}, {CH}, v{r}
    v_and_b32 v{lW[1]}, 3, v{lW[1]}
    v_cndmask_b32 v{t[7]}, v{t[7]}, v{lW[1]}, {ROLEM}
    v_lshl_add_u32 v{t[6]}, v{t[7]}, 6, v{t[6]}
    v_add_u32 v{lW[0]}, 16384, v{t[6]}
    v_xor_b32 v{lW[1]}, 128, v{lW[0]}
    v_add_u32 v{lWh[0]}, 65536, v{lW[0]}
    v_add_u32 v{lWh[1]}, 65536, v{lW[1]}
    v_lshrrev_b32 v{t[7]}, 1, v{r}
    v_xor_b32 v{t[6]}, {CH}, v{t[7]}
    v_lshl_add_u32 v{t[6]}, v{t[6]}, 6, v{t[4]}
    v_lshl_add_u32 v{t[6]}, v{t[5]}, 7, v{t[6]}
    v_add_u32 v{lB}, {REGB}, v{t[6]}
    v_lshl_add_u32 v{t[5]}, v{hi}, 2, v{r}
    v_xor_b32 v{t[7]}, {RH}, v{t[7]}
    v_lshl_add_u32 v{t[6]}, v{t[7]}, 6, v{t[4]}
    v_lshl_add_u32 v{t[6]}, v{t[5]}, 7, v{t[6]}
    s_mul_i32 {M0A2}, {WAVE}, {W2A_W}
    s_lshl_b32 {M0B2}, {WAVE}, 14
    s_add_u32 {M0B2}, {M0B2}, {REGB}
    v_add_u32 v{lW2A[0]}, {M0A2}, v{t[6]}
    v_xor_b32 v{lW2A[1]}, 64, v{lW2A[0]}
    v_add_u32 v{lW2B[0]}, {M0B2}, v{t[6]}
    v_xor_b32 v{lW2B[1]}, 64, v{lW2B[0]}
    s_lshl_b32 {M0B}, {WAVE}, 11
    s_add_u32 {M0B}, {M0B}, {REGB}
    v_lshrrev_b32 v{t[6]}, 1, v{c}
    v_lshl_add_u32 v{t[6]}, v{g1}, 1, v{t[6]}
    v_lshlrev_b32 v{t[6]}, 3, v{t[6]}
    v_lshl_add_u32 v{t[6]}, v{t[5]}, 5, v{t[6]}
    s_lshl_b32 {T0}, {WAVE}, 10
    s_add_u32 {T0}, {T0}, {REGB}
    v_add_u32 v{vP}, {T0}, v{t[6]}
    v_lshlrev_b32 v{t[4]}, 4, {vL}
    s_lshl_b32 {T0}, {RT64}, 1
    s_add_u32 {T1}, {T0}, {CH}
    s_xor_b32 {T2}, {T1}, 1
    s_mul_i32 {T1}, {T1}, {A2_STRIDE}
    s_mul_i32 {T2}, {T2}, {A2_STRIDE}
    s_lshl_b32 {T3}, {WAVE}, 14
    s_add_u32 {T1}, {T1}, {T3}
    s_add_u32 {T2}, {T2}, {T3}
    v_add_u32 v{vA2l[0]}, {T1}, v{t[4]}
    v_add_u32 v{vA2l[1]}, {T2}, v{t[4]}
    s_lshl_b32 {T0}, {RB}, 1
    s_add_u32 {T0}, {T0}, {RH}
    s_lshl_b32 {FLO}, {T0}, 8
    s_mul_i32 {T0}, {T0}, {2 * A2_STRIDE}
    v_add_u32 v{vA2s[0]}, {T0}, v{t[4]}
    v_add_u32 v{vA2s[1]}, {A2_STRIDE}, v{vA2s[0]}
    s_lshl_b32 {T1}, {HG}, 1
    s_add_u32 {T1}, {T1}, {CH}
    s_mul_i32 {HPB}, {T1}, {HP_STRIDE}
    s_add_u32 {HPB}, {HPB}, {KV_OFF}
    s_lshl_b32 {T1}, {T1}, 2
    s_add_u32 {FLO}, {FLO}, {T1}
    s_lshl_b32 {FLC}, {RT64}, 8
    s_add_u32 {FLC}, {FLC}, {F_OFF}
    s_mov_b32 {LOG2E}, 0x3fb8aa3b
    s_mov_b32 s86, 0xffff0000
    s_mov_b32 s87, 0xffff0000
    s_mul_i32 {C2S}, {WAVE}, 6
    s_cmp_eq_u32 {WAVE}, 3
    s_cselect_b32 {C2S}, 17, {C2S}
    s_add_u32 {C2S}, {C2S}, 64
    s_cmp_ge_u32 {WAVE}, 2
    s_cselect_b32 {C2NA}, 5, 6
    s_lshl_b32 {C2NW}, {C2NA}, 14
    s_lshl_b32 {C2NA}, {C2NA}, 10
    s_lshl_b32 {SW}, {RHO}, 14
    s_lshl_b32 {SA}, {RHO}, 10
    v_bfe_u32 v{t[4]}, {vL}, 2, 1
    v_mul_u32_u24 v{t[6]}, 0x8000, v{t[4]}
    v_lshl_or_b32 v{vG[0]}, v{t[6]}, 16, v{t[6]}
    v_xor_b32 v{t[5]}, v{t[4]}, v{g1}                ; b
    v_lshrrev_b32 v{t[4]}, 3, {vL}
    v_lshlrev_b32 v{t[6]}, 4, v{c}
    v_lshl_add_u32 v{t[7]}, v{t[5]}, 6, v{t[6]}      ; b*64 + sub*16
    s_lshl_b32 {T0}, {CT}, 7
    s_lshl_b32 {T1}, {WAVE}, 18
    s_add_u32 {T0}, {T0}, {T1}
    v_lshl_add_u32 v{vW2[0]}, v{t[4]}, 10, v{t[7]}
    v_add_u32 v{vW2[0]}, {T0}, v{vW2[0]}
    v_add_u32 v{vW2[1]}, 7168, v{vW2[0]}
    s_cmp_ge_u32 s2, 128
    s_cbranch_scc1 L_Q
    L_KV:
    """)
    return p.items, st1[3:]

def build(role, st1rest):
    KV = role == "KV"
    p = K(role)
    WAS = 3072 if KV else 2752
    WBS = 2752 if KV else 3072
    hi, g1, r, c = t[0], t[1], t[2], t[3]
    SEL = [208, 212]; WPHI = 216 if KV else 240
    KT = 224; VF = 240; GW = [254, 255]
    srd(p, sWB, 14 if KV else 6, 1409024 if KV else 1572864)
    if KV:
        p(f"""
        s_mul_i32 {BLK}, {HG}, 3
        s_add_u32 {BLK}, {BLK}, 1
        s_lshr_b32 {BLK}, {BLK}, 1
        s_min_u32 {BLK}, {BLK}, 10
        s_add_u32 {BLK}, {BLK}, 32
        s_mov_b32 {NBLK}, 64
        s_bitcmp1_b32 {HG}, 0
        s_cselect_b32 {NBLK}, 0, {NBLK}
        s_cmp_eq_u32 {HG}, 6
        s_cselect_b32 {NBLK}, 0, {NBLK}
        v_mul_u32_u24 v{t[7]}, {NBLK}, v{t[5]}
        v_add_u32 v{t[7]}, v{t[7]}, v{t[6]}
        s_lshl_b32 {T0}, {BLK}, 6
        """)
    else:
        p(f"s_lshl_b32 {T0}, {HG}, 7")
    p(f"""
    s_mul_i32 {T1}, {WAVE}, {16 * WBS}
    s_add_u32 {T0}, {T0}, {T1}
    v_mul_u32_u24 v{t[4]}, {WBS}, v{t[4]}
    v_add3_u32 v{vWb[0]}, v{t[4]}, v{t[7]}, {T0}
    v_add_u32 v{vWb[1]}, {8 * WBS - 1024}, v{vWb[0]}
    """)
    if KV:
        p(f"""
        v_and_b32 v{t[5]}, 1, {vL}
        v_mul_u32_u24 v{t[5]}, 0x3f80, v{t[5]}
        v_lshlrev_b32 v{t[5]}, 16, v{t[5]}
        v_and_b32 v{t[4]}, 1, {vL}
        v_xor_b32 v{t[4]}, 1, v{t[4]}
        v_mul_u32_u24 v{t[4]}, 0x3f80, v{t[4]}
        v_or_b32 v{t[4]}, v{t[4]}, v{t[5]}
        v_bfe_u32 v{t[5]}, {vL}, 1, 4
        v_lshlrev_b32 v{t[6]}, 3, v{hi}
        v_sub_u32 v{t[5]}, v{t[5]}, v{t[6]}
        """)
        for k in range(8):
            p(f"v_cmp_eq_u32 vcc, {k}, v{t[5]}\nv_cndmask_b32 v{SEL[0]+k}, 0, v{t[4]}, vcc")
        l = p.lab("nononce")
        p(f"s_or_b32 {T0}, s2, {WAVE}\ns_cmp_lg_u32 {T0}, 0\ns_cbranch_scc1 {l}")
        p.cond = True
        p(f"""s_memrealtime s[92:93]
        s_waitcnt lgkmcnt(0)
        s_or_b32 s92, s92, 1
        v_mov_b32 v{t[0]}, 0
        v_mov_b32 v{t[1]}, s92
        s_mov_b64 exec, 1
        global_store_dword v{t[0]}, v{t[1]}, s[22:23] sc1
        s_mov_b64 exec, -1""")
        p.cond = False
        p(l + ":")
        l = p.lab("nozero")
        p(f"s_cmp_lg_u32 {RB}, 0\ns_cbranch_scc1 {l}")
        p.cond = True
        p(f"""s_mul_i32 {T0}, {HG}, {2 * HP_STRIDE}
        s_mul_i32 {T1}, {WAVE}, 3072
        s_add_u32 {T0}, {T0}, {T1}
        s_add_u32 {T0}, {T0}, {KV_OFF}
        v_lshlrev_b32 v{t[0]}, 4, {vL}
        v_mov_b32 v{t[4]}, 0
        v_mov_b32 v{t[5]}, 0
        v_mov_b32 v{t[6]}, 0
        v_mov_b32 v{t[7]}, 0
        buffer_store_dwordx4 {vr(t[4],4)}, v{t[0]}, {sWS}, {T0} offen sc1
        buffer_store_dwordx4 {vr(t[4],4)}, v{t[0]}, {sWS}, {T0} offen offset:1024 sc1
        buffer_store_dwordx4 {vr(t[4],4)}, v{t[0]}, {sWS}, {T0} offen offset:2048 sc1""")
        p.cond = False
        p(l + ":")
    for g in st1rest: p.ext([Item(it.text, it.tag, it.cond) for it in g])

    def reads1(s, tt):
        slot = s % 3
        lx = lXh if slot == 2 else lX; lw = lWh if slot == 2 else lW
        so = 0 if slot == 2 else slot * RING
        T = 4 * s + tt
        wb = WB[T & 1]
        L = []
        for bi in range(2):
            for u in range(2):
                L.append(Item(f"ds_read_b64_tr_b16 {vr(wb + 4*bi + 2*u, 2)}, v{lw[bi]} offset:{so + tt*4096 + u*1024}"))
            L.append(Item(f"ds_read_b128 {ar(128*bi + 4*T, 4)}, v{lx[tt]} offset:{so + bi*4096}", tag=f"r{T}"))
        return L
    def mf1(s, tt):
        T = 4 * s + tt; wb = WB[T & 1]; L = []
        for bi in range(2):
            for u in range(2):
                d = ACC1 + 16 * (2 * bi + u); cc = "0" if T == 0 else vr(d, 16)
                if KV and bi == 1: L.append(Item(f"{MF} {vr(d,16)}, {ar(128*u + 4*T, 4)}, {vr(wb+4*bi,4)}, {cc}"))
                else: L.append(Item(f"{MF} {vr(d,16)}, {vr(wb+4*bi,4)}, {ar(128*u + 4*T, 4)}, {cc}"))
        return L
    def slot_of(i):
        if i < NA: return ("A", i)
        if i < NA + NB: return ("B", i - NA)
        if i < 2 * NA + NB: return ("A", i - NA - NB)
        return ("B", i - 2 * NA - NB)
    def skip21(q, fn):
        l = p.lab("skip")
        q(f"s_cmp_ge_u32 {WAVE}, 2\ns_cbranch_scc1 {l}")
        q.cond = True; fn(q); q.cond = False
        q(l + ":")
    def adv(q, i, S, sh, C2N):
        if i < 15: q(f"s_add_u32 {S}, {S}, {1 << sh}\ns_and_b32 {S}, {S}, {(16 << sh) - 1}")
        elif 16 <= i < 21: q(f"s_add_u32 {S}, {S}, {1 << sh}\ns_cmp_eq_u32 {S}, {C2N}\ns_cselect_b32 {S}, 0, {S}")
        elif 22 <= i < 29: q(f"s_add_u32 {S}, {S}, {1 << sh}\ns_and_b32 {S}, {S}, {(8 << sh) - 1}")
    def w2_dma(i):
        q = p.sub()
        if i == 16:
            q(f"s_lshl_b32 {T3}, {WAVE}, 4\ns_sub_u32 {T3}, {C2S}, {T3}\ns_lshl_b32 {T3}, {T3}, 14\nv_add_u32 v{vW2[0]}, {T3}, v{vW2[0]}\nv_add_u32 v{vW2[1]}, {T3}, v{vW2[1]}\ns_lshr_b32 {SW}, {RHO}, 2\ns_lshl_b32 {SW}, {SW}, 14")
        if i == 22:
            q(f"s_lshl_b32 {T3}, {WAVE}, 3\ns_sub_u32 {T3}, {T3}, {C2S}\ns_lshl_b32 {T3}, {T3}, 14\nv_add_u32 v{vW2[0]}, {T3}, v{vW2[0]}\nv_add_u32 v{vW2[1]}, {T3}, v{vW2[1]}\ns_lshr_b32 {SW}, {RHO}, 1\ns_lshl_b32 {SW}, {SW}, 14")
        def body(q):
            reg, sl = slot_of(i)
            q(f"s_add_u32 m0, {M0A2 if reg == 'A' else M0B2}, {sl * 2048}")
            sr = sW2 if i < 22 else sWO
            q(f"buffer_load_dwordx4 v{vW2[0]}, {sr}, {SW} offen lds")
            q(f"buffer_load_dwordx4 v{vW2[1]}, {sr}, {SW} offen offset:1024 lds", tag=f"w2_{i}")
        if i == 21: skip21(q, body)
        else: body(q)
        adv(q, i, SW, 14, C2NW)
        return q.items
    def a2_ld(i):
        q = p.sub()
        if i == 16:
            q(f"s_lshl_b32 {T3}, {WAVE}, 4\ns_sub_u32 {T3}, {C2S}, {T3}\ns_lshl_b32 {T3}, {T3}, 10\nv_add_u32 v{vA2l[0]}, {T3}, v{vA2l[0]}\nv_add_u32 v{vA2l[1]}, {T3}, v{vA2l[1]}\ns_lshr_b32 {SA}, {RHO}, 2\ns_lshl_b32 {SA}, {SA}, 10")
        if i == 22:
            q(f"s_lshl_b32 {T3}, {WAVE}, 3\ns_add_u32 {T3}, {T3}, 86\ns_sub_u32 {T3}, {T3}, {C2S}\ns_lshl_b32 {T3}, {T3}, 10\nv_add_u32 v{vA2l[0]}, {T3}, v{vA2l[0]}\nv_add_u32 v{vA2l[1]}, {T3}, v{vA2l[1]}\ns_lshr_b32 {SA}, {RHO}, 1\ns_lshl_b32 {SA}, {SA}, 10")
        def body(q):
            q(f"buffer_load_dwordx4 {ar(8*i,4)}, v{vA2l[0]}, {sWS}, {SA} offen sc1")
            q(f"buffer_load_dwordx4 {ar(8*i+4,4)}, v{vA2l[1]}, {sWS}, {SA} offen sc1", tag=f"a2_{i}")
        if i == 21: skip21(q, body)
        else: body(q)
        adv(q, i, SA, 10, C2NA)
        return q.items
    def spread(items, groups, lo=0.0, hi_=1.0):
        n = len(items); g = len(groups)
        return interleave(items, groups, [int(n * (lo + (hi_ - lo) * (i + 0.3) / g)) for i in range(g)]) if g else items

    p.stamp("setup")
    p.waitvm("wphi"); p("s_barrier")
    p.stamp("B0")
    for a_ in range(2):
        for u in range(2):
            p(f"ds_read_b64_tr_b16 {vr(WPHI + 4*a_ + 2*u, 2)}, v{vP} offset:{a_*512 + u*256}", tag="wphir")
    p.ext(reads1(0, 0))
    p.waitlg("wphir")
    for k in range(8): p(f"v_xor_b32 v{WPHI+k}, v{vG[0]}, v{WPHI+k}")
    pend = stage_dma(p, 2, WAS, WBS)
    for s in range(8):
        for tt in range(4):
            T = 4 * s + tt
            q = p.sub()
            if tt < 3:
                nxt = reads1(s, tt + 1)
                q.waitlg(f"r{T}")
            else:
                q.waitlg(f"r{T}")
                if s < 7: q.waitvm(f"st{s+1}")
                elif not KV: q.waitvm("st8")
                q("s_barrier")
                nxt = reads1(s + 1, 0) if s < 7 else []
                assert not pend
                if s + 3 <= (9 if KV else 8): pend = stage_dma(p, s + 3, WAS, WBS)
                if s == 3:
                    q(f"v_mov_b32 v{t[0]}, 0\nglobal_load_dword v{vP}, v{t[0]}, s[22:23] sc1", tag="nonce")
                    if KV:
                        l = p.lab("nogw")
                        q(f"s_cmp_lg_u32 {HG}, 6\ns_cbranch_scc1 {l}")
                        q.cond = True
                        q(f"""s_lshl_b32 {T0}, {WAVE}, 1
                        s_add_u32 {T1}, {T0}, {SIG}
                        s_add_u32 {T2}, {T1}, 1
                        s_and_b32 {T1}, {T1}, 7
                        s_and_b32 {T2}, {T2}, 7
                        s_lshl_b32 {T1}, {T1}, 7
                        s_lshl_b32 {T2}, {T2}, 7
                        v_lshl_add_u32 v{t[2]}, {vL}, 1, {T1}
                        v_lshl_add_u32 v{t[3]}, {vL}, 1, {T2}
                        global_load_ushort v{vG[0]}, v{t[2]}, s[18:19]
                        global_load_ushort v{vG[1]}, v{t[3]}, s[18:19]""")
                        q.cond = False
                        q(l + ":")
            m = mf1(s, tt)
            ks = (0, 1, 3) if s == 0 and tt < 3 else (1, 3)
            for k in range(4):
                q.ext([m[k]])
                if k < 3: q.ext(nxt[2*k:2*k+2])
                if k in ks and pend: q.ext(pend.pop(0))
            p.ext(q.items)
            if s == 5 and tt == 2:
                l = p.lab("nl"); d = p.lab("nd")
                p.waitvm("nonce")
                p(f"s_mov_b32 {CNT}, 400000")
                p(l + ":")
                p(f"v_readfirstlane_b32 {NONCE}, v{vP}\ns_nop 3\ns_cmp_lg_u32 {NONCE}, 0\ns_cbranch_scc1 {d}")
                p.cond = True
                p(f"global_load_dword v{vP}, v{t[0]}, s[22:23] sc1\ns_waitcnt vmcnt(0)\ns_sub_u32 {CNT}, {CNT}, 1\ns_cbranch_scc0 {l}")
                p.cond = False
                p(d + ":")
                if KV:
                    p(f"s_lshl_b32 {T1}, {HG}, 8\ns_add_u32 s27, {T1}, {F_Z}")
                    l = p.lab("nz")
                    p(f"s_or_b32 {T0}, {RB}, {WAVE}\ns_cmp_lg_u32 {T0}, 0\ns_cbranch_scc1 {l}")
                    p.cond = True
                    p.flag("s27")
                    p.cond = False
                    p(l + ":")
    assert not pend
    p.stamp("pass1")

    def softmax(b):
        q = p.sub(); m1, m2 = t[0], t[1]
        q(f"""v_max3_f32 v{m1}, v{b}, v{b+1}, v{b+2}
        v_max3_f32 v{m2}, v{b+3}, v{b+4}, v{b+5}
        v_max3_f32 v{m1}, v{m1}, v{b+6}, v{b+7}
        v_max3_f32 v{m2}, v{m2}, v{b+8}, v{b+9}
        v_max3_f32 v{m1}, v{m1}, v{b+10}, v{b+11}
        v_max3_f32 v{m2}, v{m2}, v{b+12}, v{b+13}
        v_max3_f32 v{m1}, v{m1}, v{b+14}, v{b+15}
        v_max_f32 v{m1}, v{m1}, v{m2}
        v_mul_f32_e64 v{m1}, -v{m1}, {LOG2E}""")
        for k in range(8): q(f"v_pk_fma_f32 {vr(b+2*k,2)}, {vr(b+2*k,2)}, {LOG2EP}, {vr(m1,2)} op_sel_hi:[1,0,0]")
        for k in range(16): q(f"v_exp_f32 v{b+k}, v{b+k}")
        q(f"""v_pk_add_f32 {vr(t[0],2)}, {vr(b,2)}, {vr(b+2,2)}
        v_pk_add_f32 {vr(t[2],2)}, {vr(b+4,2)}, {vr(b+6,2)}
        v_pk_add_f32 {vr(t[0],2)}, {vr(t[0],2)}, {vr(b+8,2)}
        v_pk_add_f32 {vr(t[2],2)}, {vr(t[2],2)}, {vr(b+10,2)}
        v_pk_add_f32 {vr(t[0],2)}, {vr(t[0],2)}, {vr(b+12,2)}
        v_pk_add_f32 {vr(t[2],2)}, {vr(t[2],2)}, {vr(b+14,2)}
        v_pk_add_f32 {vr(t[0],2)}, {vr(t[0],2)}, {vr(t[2],2)}
        v_add_f32 v{t[0]}, v{t[0]}, v{t[1]}
        v_rcp_f32 v{t[0]}, v{t[0]}""")
        for k in range(8): q(f"v_pk_mul_f32 {vr(b+2*k,2)}, {vr(b+2*k,2)}, {vr(t[0],2)} op_sel_hi:[1,0]")
        for k in range(8): q(f"v_cvt_pk_bf16_f32 v{b+k}, v{b+2*k}, v{b+2*k+1}")
        return q.items
    def cvt8(dst, src, n=8):
        return [Item(f"v_cvt_pk_bf16_f32 v{dst+k}, v{src+2*k}, v{src+2*k+1}") for k in range(n)]
    def relu_store(src, u, soff, q):
        q.ext(cvt8(src, src))
        for k in range(8): q(f"v_pk_max_i16 v{src+k}, v{src+k}, 0")
        q(f"buffer_store_dwordx4 {vr(src,4)}, v{vA2s[u]}, {sWS}, {soff} offen sc1")
        q(f"buffer_store_dwordx4 {vr(src+4,4)}, v{vA2s[u]}, {sWS}, {soff} offen offset:1024 sc1", tag="hst")
    def pass2(extra_at):
        q = p.sub()
        def rd(T): return [Item(f"ds_read_b64_tr_b16 {vr(WB[T&1] + 2*u, 2)}, v{lB} offset:{T*2048 + u*512}", tag=f"b{T}") for u in range(2)]
        q.ext(rd(0))
        for T in range(32):
            if T == 15 and not KV:
                q.waitlg(f"b{T}"); q.waitvm("st9"); q("s_barrier")
            if T < 31: q.ext(rd(T + 1))
            q.waitlg(f"b{T}")
            if T == 31: q("s_barrier")
            for u in range(2):
                d = ACC2 + 16 * u; cc = "0" if T == 0 else vr(d, 16)
                q(f"{MF} {vr(d,16)}, {vr(WB[T&1],4)}, {ar(128*u + 4*T, 4)}, {cc}")
                if u == 0 and T in extra_at: q.ext(extra_at[T])
        return q.items
    def add(d, k, items): d[k] = d.get(k, []) + items
    def rd2(i, wb=None):
        reg, sl = slot_of(i); base = lW2A if reg == "A" else lW2B
        wb = WB[i & 1] if wb is None else wb
        return [Item(f"ds_read_b64_tr_b16 {vr(wb + 4*nb + 2*u, 2)}, v{base[nb]} offset:{sl*2048 + u*1024}", tag=f"c{i}", cond=(i == 21)) for nb in range(2) for u in range(2)]
    def steps(lo, hi_, extra={}, pre=True, w2at={}):
        if pre: p.waitvm(f"w2_{lo}"); p.ext(rd2(lo))
        for i in range(lo, hi_):
            m = []
            for nb in range(2):
                for u in range(2):
                    d = ACC1 + 16 * (2*nb + u); cc = "0" if i == 0 else vr(d, 16)
                    m.append(Item(f"{MF} {vr(d,16)}, {vr(WB[i&1]+4*nb,4)}, {ar(8*i+4*u,4)}, {cc}"))
            if i == 21:
                l = p.lab("s21")
                p(f"s_cmp_ge_u32 {WAVE}, 2\ns_cbranch_scc1 {l}")
                p("s_waitcnt vmcnt(0)")
                p.ext(rd2(21)); p("s_waitcnt lgkmcnt(0)")
                p.ext(m)
                p(l + ":")
                continue
            p.waitlg(f"c{i}")
            p.waitvm(f"a2_{i}")
            nxt = []
            if i + 1 < hi_ and i + 1 != 21:
                p.waitvm(f"w2_{i+1}"); nxt = rd2(i + 1)
            dma = []
            for j in w2at.get(i, []):
                assert j < NA + NB or j - NA - NB <= i
                dma += w2_dma(j)
            ex = extra.get(i, [])
            p.ext([m[0]] + nxt[0:2] + [m[1]] + nxt[2:4] + ex + [m[2]] + dma + [m[3]])
    def w2sched(first, n0, quota):
        d = {}; j = first; n = n0
        while j < 30:
            k = 0
            while k < quota and j < 30 and (j < NA + NB or j - NA - NB <= n):
                d.setdefault(n, []).append(j); j += 1; k += 1
            n += 1
            assert n <= 17, "w2 schedule does not fit"
        return d
    def hk_ex():
        ex = {}
        q = p.sub(); q.poll_issue(FLC, "hkp", off=0);
        q.items[-1] = Item(f"buffer_load_dword v{vP}, v{vFl}, {sWS}, s27 offen sc1", tag="hkp")
        add(ex, O.hk_issue, [Item(f"s_add_u32 s27, {FLC}, 8192")] + q.items)
        q = p.sub(); q.poll_check("s27", "hkp"); q.stamp("HKseen")
        q(f"""s_lshl_b32 {T0}, {RT64}, 8
        s_lshl_b32 {T1}, {CH}, 7
        s_add_u32 {T0}, {T0}, {G_OFF}
        s_add_u32 {T1}, {T1}, {T0}
        s_xor_b32 {T2}, {T1}, 128
        v_and_b32 v{t[0]}, 31, {vL}
        v_lshlrev_b32 v{t[0]}, 2, v{t[0]}""")
        q.ext(a2_ld(16))
        q(f"""buffer_load_dword v{vG[0]}, v{t[0]}, {sWS}, {T1} offen sc1
        buffer_load_dword v{vG[1]}, v{t[0]}, {sWS}, {T2} offen sc1""", tag="gld")
        add(ex, O.hk_check, q.items)
        pos = O.hk_check + 1
        for i in range(17, 22):
            add(ex, min(pos, 15), a2_ld(i)); pos += 1
        return ex

    if KV:
        f = p.sub()
        for u in range(2): f.ext(cvt8(KT + 8*u, ACC1 + 16*u))
        PB = [PP, PP + 16, PP + 32, PP]
        def pmf(i): return Item(f"{MF} {vr(PB[i],16)}, {vr(WPHI + 4*(i&1),4)}, {vr(KT + 4*i,4)}, 0")
        f.ext([pmf(0), pmf(1), pmf(2)])
        for u in range(2): f.ext(cvt8(VF + 8*u, ACC1 + 32 + 16*u))
        ONES = t[4]
        for k in range(4): f(f"v_mov_b32 v{ONES+k}, 0x3f803f80")
        f(f"v_mov_b32 v{vFl}, 0")
        f.poll_issue("s27", "zp")
        D2 = [ACC2, ACC2 + 16]
        ACA = [ACC1, ACC1 + 16]; ACZ = [ACC1 + 32, ACC1 + 48]
        def tmf(i):
            d = D2[i & 1]
            return [Item(f"{MF} {vr(d,16)}, {vr(PB[i],4)}, {vr(SEL[0],4)}, 0"), Item(f"{MF} {vr(d,16)}, {vr(PB[i]+4,4)}, {vr(SEL[1],4)}, {vr(d,16)}")]
        def kvmf(i):
            d = D2[i & 1]; u = i >> 1; a_ = i & 1; L = []
            for k in range(2):
                cc = "0" if (u == 0 and k == 0) else vr(ACA[a_], 16)
                L.append(Item(f"{MF} {vr(ACA[a_],16)}, {vr(d+4*k,4)}, {vr(VF+8*u+4*k,4)}, {cc}"))
            for k in range(2):
                cc = "0" if (u == 0 and k == 0) else vr(ACZ[a_], 16)
                L.append(Item(f"{MF} {vr(ACZ[a_],16)}, {vr(ONES,4)}, {vr(d+4*k,4)}, {cc}"))
            return L
        for i in range(4):
            sm = softmax(PB[i])
            if i > 0:
                pre = cvt8(D2[(i-1)&1], D2[(i-1)&1]); km = kvmf(i - 1)
                sm = sm[:9] + pre + sm[9:13] + [km[0]] + sm[13:19] + [km[1]] + sm[19:24] + [km[2]] + sm[24:29] + [km[3]] + sm[29:]
            f.ext(sm)
            f.ext(tmf(i))
            if i == 0: f.ext([pmf(3)])
        p.ext(spread(f.items, [w2_dma(i) for i in range(O.nW2feat)], 0.15, 0.8))
        p(f"""s_lshl_b32 {T0}, {WAVE}, 11
        s_add_u32 {T0}, {T0}, {MISC}
        s_xor_b32 {T1}, {T0}, 4096
        v_lshl_add_u32 v{t[0]}, {vL}, 4, {T0}
        v_lshl_add_u32 v{t[1]}, {vL}, 4, {T1}
        v_lshrrev_b32 v{t[2]}, 5, {vL}
        v_and_b32 v{t[3]}, 31, {vL}
        v_lshlrev_b32 v{t[3]}, 2, v{t[3]}
        v_lshl_add_u32 v{PP+17}, v{t[2]}, 7, v{t[3]}
        v_lshl_add_u32 v{t[3]}, v{t[2]}, 9, v{t[3]}
        s_add_u32 {T1}, {HPB}, 4096
        s_lshl_b32 {T2}, {RH}, 11
        s_add_u32 {T0}, {HPB}, {T2}
        s_mov_b32 s92, 0
        s_mov_b32 s93, -1""")
        p.ext(cvt8(D2[1], D2[1])); p.ext(kvmf(3))
        p.poll_check("s27", "zp")
        p.stamp("feat")
        KEEP = PP; SEND = PP + 8
        l1 = p.lab("rh1"); l2 = p.lab("rhd")
        p(f"s_cmp_lg_u32 {RH}, 0\ns_cbranch_scc1 {l1}")
        for k in range(8): p(f"v_cndmask_b32 v{SEND+k}, v{ACA[0]+8+k}, v{ACA[1]+8+k}, {MK16}")
        p(f"ds_write_b128 v{t[0]}, {vr(SEND,4)}\nds_write_b128 v{t[0]}, {vr(SEND+4,4)} offset:1024")
        for k in range(8): p(f"v_cndmask_b32 v{KEEP+k}, v{ACA[0]+k}, v{ACA[1]+k}, {MK16}")
        p(f"s_branch {l2}")
        p(l1 + ":")
        for k in range(8): p(f"v_cndmask_b32 v{SEND+k}, v{ACA[0]+k}, v{ACA[1]+k}, {MK16}")
        p(f"ds_write_b128 v{t[0]}, {vr(SEND,4)}\nds_write_b128 v{t[0]}, {vr(SEND+4,4)} offset:1024")
        for k in range(8): p(f"v_cndmask_b32 v{KEEP+k}, v{ACA[0]+8+k}, v{ACA[1]+8+k}, {MK16}")
        p(l2 + ":")
        p(f"v_cndmask_b32 v{PP+16}, v{ACZ[0]}, v{ACZ[1]}, s[92:93]")
        p.waitvm("st9")
        p(f"""s_waitcnt lgkmcnt(0)
        s_barrier
        ds_read_b128 {vr(SEND,4)}, v{t[1]}
        ds_read_b128 {vr(SEND+4,4)}, v{t[1]} offset:1024
        buffer_atomic_add_f32 v{PP+16}, v{PP+17}, {sWS}, {T1} offen
        s_waitcnt lgkmcnt(0)""")
        for k in range(4): p(f"v_pk_add_f32 {vr(KEEP+2*k,2)}, {vr(KEEP+2*k,2)}, {vr(SEND+2*k,2)}")
        for k in range(8):
            p(f"buffer_atomic_add_f32 v{KEEP+k}, v{t[3]}, {sWS}, {T0} offen offset:{(8*(k>>2) + (k&3))*128}", tag="atom")
        l = p.lab("nogate")
        p(f"s_cmp_lg_u32 {HG}, 6\ns_cbranch_scc1 {l}")
        p.cond = True
        p(f"""v_bfe_u32 v{t[2]}, {vL}, 1, 1
        v_xor_b32 v{t[2]}, 1, v{t[2]}
        v_lshlrev_b32 v{t[2]}, 6, v{t[2]}
        v_lshl_add_u32 v{t[2]}, {vL}, 7, v{t[2]}
        v_add_u32 v{t[2]}, {M0B2}, v{t[2]}
        ds_write_b16 v{t[2]}, v{vG[0]}
        ds_write_b16 v{t[2]}, v{vG[1]} offset:8192
        s_waitcnt lgkmcnt(0)
        s_barrier""")
        p.cond = False
        p(l + ":")
        p.stamp("atomiss")
        ex = {}
        rest = list(range(O.nW2feat, NA))
        for n, i in enumerate(rest): add(ex, 2 + n * 5, w2_dma(i))
        q = p.sub(); q.waitvm("atom"); q.stamp("atomack")
        q(f"s_lshr_b32 {T0}, {FLO}, 8\ns_lshl_b32 {T0}, {T0}, 2\ns_and_b32 {T1}, {FLO}, 255\ns_lshl_b32 {T1}, {T1}, 6\ns_add_u32 {T0}, {T0}, {T1}\ns_add_u32 {T0}, {T0}, {F_KVD}")
        q.flag(T0)
        add(ex, O.kvd_T, q.items)
        p.ext(pass2(ex))
        p.stamp("pass2")
        l1 = p.lab("gate"); l2 = p.lab("hdone")
        p(f"v_and_b32 v{vFl}, 15, {vL}\nv_lshlrev_b32 v{vFl}, 2, v{vFl}")
        p.poll_issue(FLC, "hqp")
        p(f"s_mul_i32 {T0}, {CH}, {NBLK}\ns_cmp_lg_u32 {T0}, 0\ns_cselect_b32 {T1}, 1, 0\ns_add_u32 {T1}, {T1}, {BLK}\ns_lshl_b32 {T1}, {T1}, 11")
        p(f"s_cmp_gt_u32 {CH}, {NBLK}\ns_cbranch_scc1 {l1}")
        p.cond = True
        for u in range(2): relu_store(ACC2 + 16*u, u, T1, p)
        p(f"s_branch {l2}")
        p(l1 + ":")
        p(f"s_cmp_lg_u32 {HG}, 6\ns_cbranch_scc1 {l2}")
        for u in range(2):
            p(f"""v_mul_f32_e64 v{t[u]}, -v{ACC2+16*u}, {LOG2E}
            v_exp_f32 v{t[u]}, v{t[u]}
            s_nop 0
            v_add_f32 v{t[u]}, 1.0, v{t[u]}
            v_rcp_f32 v{t[u]}, v{t[u]}""")
        p(f"""s_and_b32 {T0}, {FLO}, 0xff00
        s_add_u32 {T0}, {T0}, {G_OFF}
        v_lshlrev_b32 v{t[2]}, 2, {vL}
        s_mov_b32 exec_hi, 0
        buffer_store_dword v{t[0]}, v{t[2]}, {sWS}, {T0} offen sc1
        buffer_store_dword v{t[1]}, v{t[2]}, {sWS}, {T0} offen offset:128 sc1
        s_mov_b32 exec_hi, -1""")
        p.cond = False
        p(l2 + ":")
        p.poll_check(FLC, "hqp")
        p.stamp("HQseen")
        pre = 6
        for i in range(pre): p.ext(a2_ld(i))
        ex = hk_ex()
        for n, i in enumerate(range(pre, 16)): ex[n] = a2_ld(i) + ex.get(n, [])
        q = p.sub(); q(f"s_add_u32 {T0}, {FLO}, {F_HK}"); q.flag(T0)
        ex[0] = q.items + ex[0]
        steps(0, 16, ex, w2at=w2sched(NA, 0, O.kv_w2q))
    else:
        p(f"s_lshl_b32 {BLK}, {HG}, 2\ns_add_u32 {BLK}, {BLK}, {CH}\ns_lshl_b32 {BLK}, {BLK}, 11\ns_add_u32 {NBLK}, {BLK}, 4096")
        for bi in range(2):
            for u in range(2): relu_store(ACC1 + 16*(2*bi+u), u, BLK if bi == 0 else NBLK, p)
        p.stamp("hst")
        ex = {}
        for n, g in enumerate(stage_dma(p, 9, WAS, WBS)): add(ex, n // 2, g)
        for i in range(NA): add(ex, 5 + int(2.5 * i), w2_dma(i))
        q = p.sub(); q.waitvm("hst"); q.stamp("hack"); q(f"s_add_u32 {T0}, {FLO}, {F_HQ}"); q.flag(T0)
        add(ex, O.hq_T, q.items)
        p.ext(pass2(ex))
        p.stamp("pass2")
        f = p.sub()
        for u in range(2): f.ext(cvt8(KT + 8*u, ACC2 + 16*u))
        for i in range(4): f(f"{MF} {vr(PP+16*i,16)}, {vr(WPHI + 4*(i&1),4)}, {vr(KT + 4*i,4)}, 0")
        f(f"v_and_b32 v{vFl}, 15, {vL}\nv_lshlrev_b32 v{vFl}, 2, v{vFl}")
        for i in range(2): f.ext(softmax(PP + 16*i))
        p.ext(spread(f.items, [w2_dma(i) for i in range(NA, NA + NB)], 0.0, 0.85))
        p.poll_issue(FLC, "hqp")
        p.ext(softmax(PP + 32)[:20])
        p.poll_check(FLC, "hqp")
        p.stamp("HQseen")
        n1 = 7
        p.ext(spread(softmax(PP + 32)[20:] + softmax(PP + 48), [a2_ld(i) for i in range(n1)]))
        p.stamp("feat")
        p(f"""v_and_b32 v{vFl}, 31, {vL}
        v_lshlrev_b32 v{vFl}, 2, v{vFl}
        s_and_b32 {T1}, {FLO}, 255
        s_lshl_b32 {T1}, {T1}, 6
        s_add_u32 s27, {T1}, {F_KVD}""")
        p.poll_issue("s27", "kvp")
        nb4 = O.q_steps_before_kvd
        steps(0, nb4)
        p(f"""v_lshrrev_b32 v{t[0]}, 5, {vL}
        v_lshl_add_u32 v{t[1]}, v{t[0]}, 11, v{vFl}
        v_bfe_u32 v{t[2]}, {vL}, 4, 1
        v_xor_b32 v{t[2]}, 1, v{t[2]}
        v_lshlrev_b32 v{t[2]}, 7, v{t[2]}
        v_lshl_add_u32 v{t[2]}, v{t[0]}, 6, v{t[2]}
        s_add_u32 {T1}, {HPB}, 4096""")
        p.poll_check("s27", "kvp")
        p.stamp("KVDseen")
        for k in range(16): p(f"buffer_load_dword v{ACC2+k}, v{t[1]}, {sWS}, {HPB} offen offset:{k*128} sc1")
        for k in range(4): p(f"buffer_load_dwordx4 {vr(ACC2+16+4*k,4)}, v{t[2]}, {sWS}, {T1} offen offset:{k*16} sc1", tag="kvld")
        n2 = n1 + O.a2_after_kv
        for i in range(n1, n2): p.ext(a2_ld(i))
        p(f"v_and_b32 v{vFl}, 15, {vL}\nv_lshlrev_b32 v{vFl}, 2, v{vFl}")
        p(f"s_lshl_b32 {T0}, {HG}, 2\ns_lshl_b32 {T1}, {CH}, 1\ns_add_u32 {T0}, {T0}, {T1}\ns_add_u32 {T0}, {T0}, 86\ns_lshl_b32 s27, {T0}, 10")
        steps(nb4, n1)
        p.waitvm("kvld")
        p.stamp("kvld")
        p.ext(cvt8(ACC2, ACC2)); p.ext(cvt8(ACC2 + 16, ACC2 + 16))
        for k in range(8): p(f"v_cndmask_b32 v{KT+k}, v{ACC2+k}, v{ACC2+16+k}, {MK16}")
        DB = [KT + 16, ACC2, ACC2 + 16, KT + 16]
        def nm(i):
            d = DB[i]; a_ = i & 1
            p(f"{MF} {vr(d,16)}, {vr(KT+8*a_,4)}, {vr(PP+16*i,4)}, 0")
            p(f"{MF} {vr(d,16)}, {vr(KT+8*a_+4,4)}, {vr(PP+16*i+4,4)}, {vr(d,16)}")
        def ofin(i):
            d = DB[i]; a_ = i & 1; u = i >> 1
            den = d + 8 if a_ == 0 else d; num = d + 8 * a_; o = PP + 16 * i + 8
            p(f"v_add_f32 v{t[4]}, 0x358637bd, v{den}\nv_rcp_f32 v{t[4]}, v{t[4]}")
            for k in range(4): p(f"v_pk_mul_f32 {vr(num+2*k,2)}, {vr(num+2*k,2)}, {vr(t[4],2)} op_sel_hi:[1,0]")
            p.ext(cvt8(o, num, 4))
            p(f"buffer_store_dwordx4 {vr(o,4)}, v{vA2s[u]}, {sWS}, s27 offen offset:{a_*1024} sc1", tag="ost")
        nm(0)
        for k in range(8): p(f"v_cndmask_b32 v{KT+8+k}, v{ACC2+16+k}, v{ACC2+k}, {MK16}")
        nm(1); nm(2); ofin(0); nm(3); ofin(1); ofin(2); ofin(3)
        p.stamp("ost")
        ex = hk_ex()
        if O.hk_issue < n1:
            raise ValueError
        rem = [a2_ld(i) for i in range(n2, 16)]
        for g in rem[:2]: p.ext(g)
        for n, g in enumerate(rem[2:]): ex[n1 + n] = g + ex.get(n1 + n, [])
        q = p.sub(); q.waitvm("ost"); q.stamp("oack"); q(f"s_add_u32 {T0}, {FLO}, {F_O}"); q.flag(T0)
        add(ex, n1 + 3, q.items)
        steps(n1, 16, ex, w2at=w2sched(NA + NB, n1, O.q_w2q))
    p.stamp("cls1")
    steps(16, 22)
    p(f"s_add_u32 s27, {FLC}, 16384")
    p.poll_issue("s27", "op")
    W3 = [ACC2 + 8*k for k in range(4)] + [KT + 8*k for k in range(4)]
    p.waitvm("w2_29")
    for k in range(8): p.ext(rd2(22 + k, W3[k]))
    p.waitvm("gld")
    p(f"v_sub_f32 v{t[0]}, 1.0, v{vG[0]}\nv_sub_f32 v{t[2]}, 1.0, v{vG[1]}\nv_mov_b32 v{t[4]}, v{vG[0]}\nv_mov_b32 v{t[6]}, v{vG[1]}")
    p.stamp("cls2")
    p.poll_check("s27", "op")
    p.stamp("Oseen")
    for i in range(22, 30): p.ext(a2_ld(i))
    p("s_waitcnt lgkmcnt(0)\ns_barrier")
    for sl in range(4):
        for k in range(8): p(f"v_pk_mul_f32 {vr(ACC1+16*sl+2*k,2)}, {vr(ACC1+16*sl+2*k,2)}, {vr(t[2*(sl&1)],2)} op_sel_hi:[1,0]")
    for sl in range(1, 4):
        p(f"s_xor_b32 {T0}, {WAVE}, {sl}\ns_lshl_b32 {T0}, {T0}, 14\ns_add_u32 {T0}, {T0}, {REGB + 4096 + (sl-1)*4096}\nv_lshl_add_u32 v{WB[0]+sl}, {vL}, 4, {T0}")
    p(f"""s_add_u32 {T0}, {M0B2}, 4096
    v_lshl_add_u32 v{WB[0]}, {vL}, 4, {T0}
    s_lshl_b32 {T0}, {RT64}, 6
    s_lshl_b32 {T1}, {CH}, 5
    s_add_u32 {T0}, {T0}, {T1}
    s_lshl_b32 {T0}, {T0}, 10
    s_lshl_b32 {T1}, {CT}, 7
    s_add_u32 {T0}, {T0}, {T1}
    s_lshl_b32 {T1}, {RH}, 6
    s_add_u32 {T0}, {T0}, {T1}
    v_and_b32 v{t[0]}, 31, {vL}
    v_lshrrev_b32 v{t[1]}, 5, {vL}
    v_lshlrev_b32 v{t[1]}, 4, v{t[1]}
    v_lshl_add_u32 v{t[0]}, v{t[0]}, 10, v{t[1]}""")
    def m3(i, sl):
        nb, u = sl >> 1, sl & 1
        d = ACC3 + 16 * sl; cc = "0" if i == 22 else vr(d, 16)
        return Item(f"{MF} {vr(d,16)}, {vr(W3[i-22]+4*nb,4)}, {ar(8*i+4*u,4)}, {cc}")
    NKM = 5
    for i in range(22, 22 + NKM):
        p.waitvm(f"a2_{i}")
        for sl in range(4): p.ext([m3(i, sl)])
    p.waitvm("a2_29")
    p.stamp("old")
    def comb(sl):
        L = [Item(f"v_pk_fma_f32 {vr(ACC1+16*sl+2*k,2)}, {vr(ACC3+16*sl+2*k,2)}, {vr(t[4+2*(sl&1)],2)}, {vr(ACC1+16*sl+2*k,2)} op_sel_hi:[1,0,1]") for k in range(8)]
        if sl: L += [Item(f"ds_write_b128 v{WB[0]+sl}, {vr(ACC1+16*sl+4*k,4)} offset:{k*1024}") for k in range(4)]
        return L
    order = (1, 2, 3, 0)
    for n, sl in enumerate(order):
        ms = [m3(i, sl) for i in range(22 + NKM, 30)]
        if n >= 2:
            cb = comb(order[n - 2]); per = (len(cb) + len(ms) - 1) // len(ms)
            for k, mm in enumerate(ms): p.ext([mm] + cb[k*per:(k+1)*per])
        else: p.ext(ms)
    p.ext(comb(3)); p.ext(comb(0))
    p("s_waitcnt lgkmcnt(0)\ns_barrier")
    for sl in range(1, 4):
        for k in range(4): p(f"ds_read_b128 {vr(ACC1+16*sl+4*k,4)}, v{WB[0]} offset:{(sl-1)*4096 + k*1024}", tag=f"red{sl}")
    for sl in range(1, 4):
        p.waitlg(f"red{sl}")
        for k in range(8): p(f"v_pk_add_f32 {vr(ACC1+2*k,2)}, {vr(ACC1+2*k,2)}, {vr(ACC1+16*sl+2*k,2)}")
    p.ext(cvt8(ACC1, ACC1))
    p(f"""v_permlane32_swap_b32 v{ACC1}, v{ACC1+2}
    v_permlane32_swap_b32 v{ACC1+1}, v{ACC1+3}
    buffer_store_dwordx4 {vr(ACC1,4)}, v{t[0]}, {sOUT}, {T0} offen {O.outflag}
    v_permlane32_swap_b32 v{ACC1+4}, v{ACC1+6}
    v_permlane32_swap_b32 v{ACC1+5}, v{ACC1+7}
    buffer_store_dwordx4 {vr(ACC1+4,4)}, v{t[0]}, {sOUT}, {T0} offen offset:32 {O.outflag}""")
    if O.stamps:
        p.stamp("outiss")
        p("s_waitcnt vmcnt(0)")
        p.stamp("end")
        p(f"""s_lshl_b32 {T0}, s2, 2
        s_add_u32 {T0}, {T0}, {WAVE}
        s_lshl_b32 {T0}, {T0}, 8
        s_add_u32 {T0}, {T0}, {STAMP_OFF}
        v_lshlrev_b32 v{t[0]}, 2, {vL}
        buffer_store_dword v{vStamp}, v{t[0]}, {sWS}, {T0} offen""")
    p("s_endpgm")
    return p.items, p.names

def generate():
    e, st1rest = entry()
    e = hazard_pad(e)
    kvi, n1 = build("KV", st1rest); qi, n2 = build("Q", st1rest)
    kv = hazard_pad(resolve_waits(e + kvi))
    assert [x.text for x in kv[:len(e)]] == [x.text for x in e]
    q = hazard_pad(resolve_waits(e + [Item("L_Q:")] + qi))
    body = render(e) + render(kv[len(e):]) + ".p2align 6\n" + render(q[len(e):]) + "L_end:\n    s_endpgm\n"
    return (HEADER + f"; @launch grid=(256,1,1) block=(256,1,1) lds={LDS_BYTES}\n"
            + (f"; stamps KV {' '.join(n1)}\n; stamps Q {' '.join(n2)}\n" if O.stamps else "")
            + '.amdgcn_target "amdgcn-amd-amdhsa--gfx950"\n.text\n' + kernel_open(KNAME) + body
            + '.section .rodata,"a"\n' + descriptor(KNAME, 256, 256, 102))

if __name__ == "__main__":
    out = sys.argv[1]
    for a in sys.argv[2:]:
        k, v = a.split("=")
        cur = getattr(O, k)
        setattr(O, k, (v == "1") if isinstance(cur, bool) else type(cur)(v))
    open(out, "w").write(generate())
```
